```python
import torch

def _softmax(x, axis=-1):
    return torch.softmax(x, dim=axis)
def _gelu(x):
    return torch.nn.functional.gelu(x, approximate="tanh")
def _silu(x):
    return torch.nn.functional.silu(x)
def _sigmoid(x):
    return torch.sigmoid(x)
def _layernorm(x, axis=-1, eps=1e-5):
    m = x.mean(dim=axis, keepdim=True)
    v = x.var(dim=axis, keepdim=True, unbiased=False)
    return (x - m) / torch.sqrt(v + eps)
def _scatter_add(tgt, idx, src, axis=0):
    return tgt.clone().index_add_(axis, idx, src)
def _segment_sum(src, seg, n):
    out = torch.zeros((n,) + src.shape[1:], dtype=src.dtype)
    return out.index_add_(0, seg, src)
def _pad(x, pw):
    flat = tuple(v for pair in reversed(pw) for v in pair)
    return torch.nn.functional.pad(x, flat)

kernel_name = 'gated_mix__sliding_local_dilated__mixer_token_mlp__prompt'

def setup_inputs():

    _w = (lambda a: (lambda t: t.to(torch.bfloat16) if t.is_floating_point() else t)(torch.as_tensor(a)))
    def _A_setup():
        B, S, D = 1, 2048, 1024
        return {
            "x": _w((lambda *s: torch.randn(*s, dtype=torch.bfloat16) * 0.05)(B, S, D)),
            "wqkv": _w((lambda *s: torch.randn(*s, dtype=torch.bfloat16) * 0.8)(D, 3 * D)),
            "wo": _w((lambda *s: torch.randn(*s, dtype=torch.bfloat16) * 0.05)(D, D)),
        }
    _A_in = _A_setup()

    def _B_setup():
        B, S, D, F = 1, 2048, 1024, 3584
        return {
            "x": _w((lambda *s: torch.randn(*s, dtype=torch.bfloat16) * 0.05)(B, S, D)),
            "w1": _w((lambda *s: torch.randn(*s, dtype=torch.bfloat16) * 3.2)(S, F) * (S ** -0.5)),
            "b1": _w((lambda *s: torch.randn(*s, dtype=torch.bfloat16) * 3.2)(F) * 0.02),
            "w2": _w((lambda *s: torch.randn(*s, dtype=torch.bfloat16) * 0.2)(F, S) * (F ** -0.5)),
            "b2": _w((lambda *s: torch.randn(*s, dtype=torch.bfloat16) * 0.2)(S) * 0.02),
        }
    _B_in = _B_setup()

    return {
        "A_x": _A_in["x"],
        "A_wqkv": _A_in["wqkv"],
        "A_wo": _A_in["wo"],
        "B_x": _B_in["x"],
        "B_w1": _B_in["w1"],
        "B_b1": _B_in["b1"],
        "B_w2": _B_in["w2"],
        "B_b2": _B_in["b2"],
        "gate_w": _w((lambda *s: torch.randn(*s, dtype=torch.bfloat16) * 0.05)(1024) * 16.0),
    }

def reference(A_x, A_wqkv, A_wo, B_x, B_w1, B_b1, B_w2, B_b2, gate_w):
    def _A_ref(x, wqkv, wo):
        B, S, D = x.shape
        H = 32; Dh = D // H
        W, dil = 8, 2
        qkv = (lambda x, *d: x.permute(*d))((x @ wqkv).reshape(B, S, 3, H, Dh), 2, 0, 3, 1, 4)
        q, k, v = qkv[0], qkv[1], qkv[2]
        scale = Dh ** -0.5
        pos = torch.arange(S)
        off = torch.arange(W) * dil
        idx = pos[:, None] - off[None, :]
        mask = idx >= 0
        idx_c = torch.where(mask, idx, 0).reshape(-1)
        kg = k[:, :, idx_c, :].reshape(B, H, S, W, Dh)
        vg = v[:, :, idx_c, :].reshape(B, H, S, W, Dh)
        logits = torch.einsum("bhsd,bhswd->bhsw", q, kg) * scale
        logits = torch.where(mask[None, None, :, :], logits, -1e9)
        attn = _softmax(logits, axis=-1)
        o = torch.einsum("bhsw,bhswd->bhsd", attn, vg)
        return (lambda x, *d: x.permute(*d))(o, 0, 2, 1, 3).reshape(B, S, D) @ wo

    def _B_ref(x, w1, b1, w2, b2):
        B, S, D = x.shape
        h = _layernorm(x, axis=-1)
        u = torch.einsum("bsd,sf->bdf", h, w1) + b1
        u = _gelu(u)
        y = torch.einsum("bdf,fs->bds", u, w2) + b2
        return (lambda x, *d: x.permute(*d))(y, 0, 2, 1)

    x = A_x
    g = _sigmoid((x * gate_w).sum(-1, keepdims=True))
    a = _A_ref(x, A_wqkv, A_wo)
    b = _B_ref(x, B_w1, B_b1, B_w2, B_b2)
    return g * a + (1 - g) * b
```

```python
class Asm:
    def __init__(self):
        self.lines = []
        self.uid = 0
    def __call__(self, s=""):
        for ln in s.split("\n"):
            ln = ln.rstrip()
            if ln.strip() == "":
                continue
            if ln.strip().endswith(":") or ln.strip().startswith("."):
                self.lines.append(ln.strip())
            else:
                self.lines.append("    " + ln.strip())
    def c(self, s):
        self.lines.append("    ; " + s)
    def label(self, base):
        self.uid += 1
        return "%s_%d" % (base, self.uid)
    def text(self):
        return "\n".join(self.lines) + "\n"

def vr(b, n=1):
    return "v%d" % b if n == 1 else "v[%d:%d]" % (b, b + n - 1)
def sr(b, n=1):
    return "s%d" % b if n == 1 else "s[%d:%d]" % (b, b + n - 1)

class RegAlloc:
    def __init__(self, start, limit):
        self.next = start
        self.limit = limit
        self.names = {}
    def alloc(self, name, n=1, align=1):
        b = (self.next + align - 1) // align * align
        assert b + n <= self.limit, "out of registers allocating %s (%d at %d)" % (name, n, b)
        self.next = b + n
        self.names[name] = (b, n)
        return b

def kernel_header(a, name):
    a(".text")
    a(".globl %s" % name)
    a(".p2align 8")
    a(".type %s,@function" % name)
    a("%s:" % name)

def kernel_desc(a, name, nvgpr, nsgpr=102, accum=None):
    if accum is None:
        accum = (nvgpr + 3) // 4 * 4
    a('.section .rodata,"a"')
    a(".p2align 6")
    a(".amdhsa_kernel %s" % name)
    a.lines.append("  .amdhsa_next_free_vgpr %d" % nvgpr)
    a.lines.append("  .amdhsa_next_free_sgpr %d" % nsgpr)
    a.lines.append("  .amdhsa_accum_offset %d" % accum)
    a.lines.append("  .amdhsa_group_segment_fixed_size 0")
    a.lines.append("  .amdhsa_kernarg_size 96")
    a.lines.append("  .amdhsa_user_sgpr_count 2")
    a.lines.append("  .amdhsa_user_sgpr_kernarg_segment_ptr 1")
    a.lines.append("  .amdhsa_system_sgpr_workgroup_id_x 1")
    a(".end_amdhsa_kernel")

def srd(a, d, base, nbytes, off=0):
    if off:
        a("s_add_u32 s%d, s%d, 0x%x" % (d, base, off))
        a("s_addc_u32 s%d, s%d, 0" % (d + 1, base + 1))
    else:
        a("s_mov_b32 s%d, s%d" % (d, base))
        a("s_mov_b32 s%d, s%d" % (d + 1, base + 1))
    a("s_mov_b32 s%d, 0x%x" % (d + 2, nbytes))
    a("s_mov_b32 s%d, 0x20000" % (d + 3))
```

```python
from asmlib import *
import struct

WS_HT = 0
WS_U = 0x400000
WS_O = 0xC00000
WS_G = 0x1000000
WS_ST = 0x1100000
WS_X = 0x1200000
HT_BYTES = 2048 * 1024 * 2
U_BYTES = 1024 * 3584 * 2
O_BYTES = 2048 * 1024 * 2
MF = "v_mfma_f32_16x16x32_bf16"

def f2u(x):
    return struct.unpack("<I", struct.pack("<f", x))[0]

def weave(a, mf, fill, per_gap=1, start=0):
    fill = list(fill)
    for i, m in enumerate(mf):
        a(m)
        if i >= start:
            for _ in range(per_gap):
                if fill:
                    a(fill.pop(0))
    for r in fill:
        a(r)

def load_ptrs(a):
    a("s_load_dwordx16 s[4:19], s[0:1], 0")
    a("s_load_dwordx8 s[20:27], s[0:1], 64")
    a("v_lshrrev_b32 v1, 6, v0")
    a("v_and_b32 v0, 63, v0")
    a("v_readfirstlane_b32 s3, v1")

class G128:
    NB = 4
    STG = 32768
    def __init__(self, a, ra):
        self.a = a
        self.ra = ra
        self.vt = [ra.alloc("t%d" % i) for i in range(8)]
        self.aT = {}
        self.aF = {}
        self.fr = ra.alloc("frag", 64, 4)
    def fA(self, s, i): return self.fr + s * 32 + i * 4
    def fB(self, s, i): return self.fr + s * 32 + 16 + i * 4
    def setup_lane(self):
        a, vt = self.a, self.vt
        a("v_and_b32 v%d, 3, v0" % vt[0])
        a("v_bfe_u32 v%d, v0, 2, 2" % vt[1])
        a("v_lshrrev_b32 v%d, 4, v0" % vt[2])
        a("v_and_b32 v%d, 1, v%d" % (vt[5], vt[2]))
        a("v_lshl_add_u32 v%d, v%d, 2, v%d" % (vt[5], vt[5], vt[1]))
        a("v_lshlrev_b32 v%d, 1, v%d" % (vt[5], vt[5]))
        a("v_lshrrev_b32 v%d, 1, v%d" % (vt[4], vt[0]))
        a("v_and_b32 v%d, 1, v%d" % (vt[6], vt[0]))
        a("v_lshlrev_b32 v%d, 3, v%d" % (vt[6], vt[6]))
    def setup_T(self, region, korder, swblk):
        a, vt, ra = self.a, self.vt, self.ra
        regs = [[ra.alloc("aT") for i in range(4)] for bp in range(2)]
        self.aT[(region, korder)] = regs
        a("v_lshl_add_u32 v%d, v%d, %d, v%d" % (vt[3], vt[2], 3 if korder == 'n' else 2, vt[1]))
        a("v_lshl_add_u32 v%d, v%d, 8, v%d" % (vt[3], vt[3], vt[6]))
        a("s_lshl_b32 s36, s%d, 3" % swblk)
        for i in range(4):
            a("s_add_u32 s37, s36, %d" % (2 * i))
            a("v_add_u32 v%d, s37, v%d" % (vt[7], vt[4]))
            a("v_xor_b32 v%d, v%d, v%d" % (vt[7], vt[7], vt[5]))
            a("v_lshl_add_u32 v%d, v%d, 4, v%d" % (regs[0][i], vt[7], vt[3]))
            if region:
                a("v_add_u32 v%d, %d, v%d" % (regs[0][i], 16384, regs[0][i]))
            a("v_add_u32 v%d, %d, v%d" % (regs[1][i], 65536, regs[0][i]))
    def setup_F(self, region, swblk):
        a, vt, ra = self.a, self.vt, self.ra
        regs = [ra.alloc("aF") for bp in range(2)]
        self.aF[region] = regs
        a("s_lshl_b32 s36, s%d, 12" % swblk)
        if region:
            a("s_add_u32 s36, s36, 16384")
        a("v_lshlrev_b32 v%d, 4, v0" % regs[0])
        a("v_add_u32 v%d, s36, v%d" % (regs[0], regs[0]))
        a("v_add_u32 v%d, %d, v%d" % (regs[1], 65536, regs[0]))
    def reads(self, desc, sub):
        tA, tB, ko, buf = desc
        bp, boff = buf >> 1, (buf & 1) * self.STG
        out = []
        for region, ty, ff in ((0, tA, self.fA), (1, tB, self.fB)):
            o = []
            for i in range(4):
                if ty == 'F':
                    o.append("ds_read_b128 %s, v%d offset:%d" % (vr(ff(sub, i), 4), self.aF[region][bp], boff + sub * 8192 + i * 1024))
                else:
                    ad = self.aT[(region, ko)][bp][i]
                    o.append("ds_read_b64_tr_b16 %s, v%d offset:%d" % (vr(ff(sub, i), 2), ad, boff + sub * 8192))
                    o.append("ds_read_b64_tr_b16 %s, v%d offset:%d" % (vr(ff(sub, i) + 2, 2), ad, boff + sub * 8192 + (1024 if ko == 'n' else 4096)))
            out.append(o)
        return out[0] + out[1]
    def mfmas(self, acc, st):
        out = []
        for ia in range(4):
            for ib in range(4):
                r = acc + (ia * 4 + ib) * 4
                out.append("%s %s, %s, %s, %s" % (MF, vr(r, 4), vr(self.fA(st, ia), 4), vr(self.fB(st, ib), 4), vr(r, 4)))
        return out
    def stage(self, acc, cur, nxt, extra0=(), extra1=()):
        a = self.a
        a("s_waitcnt lgkmcnt(0)")
        weave(a, self.mfmas(acc, 0), self.reads(cur, 1) + list(extra0))
        a("s_waitcnt lgkmcnt(0)")
        if nxt is not None:
            a("s_barrier")
        weave(a, self.mfmas(acc, 1), (self.reads(nxt, 0) if nxt is not None else []) + list(extra1))
    def run(self, acc, tA, tB, ko, T, nxt_after, lab, sctr):
        a = self.a
        assert T % 4 == 0
        d = lambda b: (tA, tB, ko, b)
        if T > 4:
            a("s_mov_b32 s%d, 0" % sctr)
            a("%s:" % lab)
            for b in range(4):
                self.stage(acc, d(b), d((b + 1) % 4), extra1=(["s_add_u32 s%d, s%d, 1" % (sctr, sctr), "s_cmp_lt_u32 s%d, %d" % (sctr, T // 4 - 1)] if b == 3 else []))
            a("s_cbranch_scc1 %s" % lab)
        for b in range(4):
            self.stage(acc, d(b), d(b + 1) if b < 3 else nxt_after)

class L128:
    def __init__(self, a):
        self.a = a
        self.nv = 2
    def setup_T(self, ld, korder):
        a = self.a
        regs = [self.nv + i for i in range(4)]
        self.nv += 4
        t0, t1, t2, t3 = 250, 251, 252, 253
        a("v_lshrrev_b32 v%d, 4, v0" % t0)
        a("v_and_b32 v%d, 15, v0" % t1)
        a("s_mov_b32 s36, %d" % ld)
        a("v_mul_lo_u32 v%d, v%d, s36" % (t3, t0))
        for i in range(4):
            hi = (i >> 1) & 1 if korder == 'n' else i & 1
            a("v_lshlrev_b32 v%d, 1, v%d" % (t2, t0))
            if hi:
                a("v_or_b32 v%d, 8, v%d" % (t2, t2))
            a("v_xor_b32 v%d, v%d, v%d" % (t2, t2, t1))
            a("v_lshl_add_u32 v%d, v%d, 4, v%d" % (t2, t2, t3))
            a("v_add_u32 v%d, %d, v%d" % (regs[i], i * (4 * ld - 1024), t2))
        return regs
    def setup_F(self):
        a = self.a
        r = self.nv
        self.nv += 1
        a("v_lshlrev_b32 v%d, 4, v0" % r)
        return [r] * 4
    def issue(self, A, B, sbuf, slw):
        a = self.a
        a("s_add_u32 m0, s%d, s%d" % (sbuf, slw))
        a("s_add_u32 s43, s%d, 16384" % sbuf)
        for i in range(4):
            a("buffer_load_dwordx4 v%d, s[%d:%d], s%d offen offset:%d lds" % (A[0][i], A[1], A[1] + 3, A[2], i * 1024))
        a("s_add_u32 m0, s43, s%d" % slw)
        a("s_add_u32 s%d, s%d, 32768" % (sbuf, sbuf))
        for i in range(4):
            a("buffer_load_dwordx4 v%d, s[%d:%d], s%d offen offset:%d lds" % (B[0][i], B[1], B[1] + 3, B[2], i * 1024))
        a("s_and_b32 s%d, s%d, 0x1ffff" % (sbuf, sbuf))
```

```python
from asmlib import *
from core import *
from kern import stamp_begin, stamp_mid, stamp_end, rot_stage, CS, LOG2E

STG1 = 43008
QKV = 65536

def gen_k1(a, name="k1_kernel", stamp=False, rot=(1, 1, 4)):
    T = 16
    kernel_header(a, name)
    a("s_cmp_ge_u32 s2, 256")
    a("s_cbranch_scc1 %s_end" % name)
    stamp_begin(a, stamp)
    load_ptrs(a)
    a("s_and_b32 s28, s2, 7")
    a("s_lshr_b32 s29, s2, 3")
    a("s_and_b32 s30, s28, 1")
    a("s_lshl_b32 s30, s30, 3")
    a("s_and_b32 s32, s29, 7")
    a("s_add_u32 s30, s30, s32")
    a("s_lshr_b32 s31, s28, 1")
    a("s_lshl_b32 s31, s31, 2")
    a("s_lshr_b32 s33, s29, 3")
    a("s_add_u32 s31, s31, s33")
    a("s_waitcnt lgkmcnt(0)")
    srd(a, 48, 4, 2048 * 1024 * 2)
    srd(a, 52, 6, 1024 * 3072 * 2)
    srd(a, 56, 26, HT_BYTES, WS_HT)
    srd(a, 60, 26, O_BYTES, WS_O)
    srd(a, 64, 20, 2048)
    srd(a, 68, 26, 2048 * 4, WS_G)
    a("s_cmp_ge_u32 s3, 4")
    a("s_cbranch_scc1 %s_loader" % name)
    ra = RegAlloc(1, 256)
    vt = [ra.alloc("t%d" % i) for i in range(8)]
    vA = ra.alloc("aA"); vB = [ra.alloc("aB0"), ra.alloc("aB1")]
    vAb = ra.alloc("aAb"); vBb = [ra.alloc("aBb0"), ra.alloc("aBb1")]
    acc = ra.alloc("acc", 108, 4)
    fr = ra.alloc("frag", 96, 4)
    def accr(p, tb): return acc + (p * 9 + tb) * 4
    def fA(s, p): return fr + s * 48 + p * 4
    def fB(s, tb): return fr + s * 48 + 12 + tb * 4
    a("v_and_b32 v%d, 3, v0" % vt[0])
    a("v_bfe_u32 v%d, v0, 2, 2" % vt[1])
    a("v_lshrrev_b32 v%d, 4, v0" % vt[2])
    a("v_lshl_add_u32 v%d, v%d, 3, v%d" % (vt[3], vt[2], vt[1]))
    a("v_lshlrev_b32 v%d, 7, v%d" % (vt[3], vt[3]))
    a("v_and_b32 v%d, 1, v%d" % (vt[4], vt[0]))
    a("v_lshl_add_u32 v%d, v%d, 3, v%d" % (vt[3], vt[4], vt[3]))
    a("v_lshrrev_b32 v%d, 1, v%d" % (vt[4], vt[1]))
    a("v_and_b32 v%d, 1, v%d" % (vt[5], vt[2]))
    a("v_lshl_add_u32 v%d, v%d, 1, v%d" % (vt[4], vt[5], vt[4]))
    a("v_lshlrev_b32 v%d, 1, v%d" % (vt[4], vt[4]))
    a("v_lshrrev_b32 v%d, 1, v%d" % (vt[5], vt[0]))
    a("s_lshl_b32 s36, s3, 1")
    a("v_add_u32 v%d, s36, v%d" % (vt[5], vt[5]))
    a("v_xor_b32 v%d, v%d, v%d" % (vt[5], vt[5], vt[4]))
    a("v_lshl_add_u32 v%d, v%d, 4, v%d" % (vAb, vt[5], vt[3]))
    a("v_add_u32 v%d, 18432, v%d" % (vAb, vAb))
    a("v_and_b32 v%d, 15, v0" % vt[3])
    a("v_lshrrev_b32 v%d, 1, v%d" % (vt[4], vt[3]))
    a("v_xor_b32 v%d, v%d, v%d" % (vt[4], vt[4], vt[2]))
    a("v_lshlrev_b32 v%d, 4, v%d" % (vt[4], vt[4]))
    a("v_lshl_add_u32 v%d, v%d, 7, v%d" % (vBb[0], vt[3], vt[4]))
    a("v_xor_b32 v%d, 64, v%d" % (vBb[1], vBb[0]))
    a("v_mov_b32 v%d, v%d" % (vA, vAb))
    a("v_mov_b32 v%d, v%d" % (vB[0], vBb[0]))
    a("v_mov_b32 v%d, v%d" % (vB[1], vBb[1]))
    for i in range(108):
        a("v_mov_b32 v%d, 0" % (acc + i))
    def reads(sub):
        out = []
        for p in range(3):
            out.append("ds_read_b64_tr_b16 %s, v%d offset:%d" % (vr(fA(sub, p), 2), vA, p * 8192 + sub * 4096))
            out.append("ds_read_b64_tr_b16 %s, v%d offset:%d" % (vr(fA(sub, p) + 2, 2), vA, p * 8192 + sub * 4096 + 512))
        for tb in range(9):
            out.append("ds_read_b128 %s, v%d offset:%d" % (vr(fB(sub, tb), 4), vB[sub], tb * 2048))
        return out
    def mfmas(st):
        out = []
        for tb in range(9):
            for p in range(3):
                if p == 0 and tb == 0: continue
                r = accr(p, tb)
                out.append("%s %s, %s, %s, %s" % (MF, vr(r, 4), vr(fA(st, p), 4), vr(fB(st, tb), 4), vr(r, 4)))
        return out
    a("s_mov_b32 s38, 0")
    a("s_mov_b32 s39, 0")
    a("s_barrier")
    stamp_mid(a, stamp, 0)
    for r in reads(0): a(r)
    def body(last):
        a("s_waitcnt lgkmcnt(0)")
        ex = [] if last else ["s_add_u32 s38, s38, %d" % STG1, "s_cmp_eq_u32 s38, %d" % (3 * STG1), "s_cselect_b32 s38, 0, s38"]
        weave(a, mfmas(0), reads(1) + ex)
        a("s_waitcnt lgkmcnt(0)")
        if last:
            weave(a, mfmas(1), [])
        else:
            a("s_barrier")
            rd = reads(0)
            fill = ["v_add_u32 v%d, s38, v%d" % (vA, vAb), "v_add_u32 v%d, s38, v%d" % (vB[0], vBb[0])] + rd + \
                   ["v_add_u32 v%d, s38, v%d" % (vB[1], vBb[1]), "s_add_u32 s39, s39, 1", "s_cmp_lt_u32 s39, %d" % (T - 1)]
            weave(a, mfmas(1), fill)
    a("%s_cloop:" % name)
    body(False)
    a("s_cbranch_scc1 %s_cloop" % name)
    body(True)
    stamp_mid(a, stamp, 1)
    a("v_and_b32 v%d, 15, v0" % vt[0])
    a("v_lshrrev_b32 v%d, 4, v0" % vt[1])
    a("v_and_b32 v%d, 1, v%d" % (vt[2], vt[0]))
    a("v_lshrrev_b32 v%d, 1, v%d" % (vt[3], vt[0]))
    a("v_mul_u32_u24 v%d, 72, v%d" % (vt[4], vt[2]))
    a("v_add_u32 v%d, v%d, v%d" % (vt[3], vt[3], vt[4]))
    a("v_lshlrev_b32 v%d, 7, v%d" % (vt[3], vt[3]))
    a("v_lshrrev_b32 v%d, 2, v%d" % (vt[4], vt[0]))
    a("v_lshl_add_u32 v%d, v%d, 2, v%d" % (vt[4], vt[2], vt[4]))
    a("v_lshrrev_b32 v%d, 1, v%d" % (vt[5], vt[1]))
    a("s_lshl_b32 s36, s3, 1")
    a("v_add_u32 v%d, s36, v%d" % (vt[5], vt[5]))
    a("v_xor_b32 v%d, v%d, v%d" % (vt[5], vt[5], vt[4]))
    a("v_lshl_add_u32 v%d, v%d, 4, v%d" % (vt[3], vt[5], vt[3]))
    a("v_and_b32 v%d, 1, v%d" % (vt[5], vt[1]))
    a("v_lshl_add_u32 v%d, v%d, 3, v%d" % (vt[3], vt[5], vt[3]))
    a("v_add_u32 v%d, %d, v%d" % (vt[6], QKV, vt[3]))
    a("v_xor_b32 v%d, 64, v%d" % (vt[7], vt[6]))
    k = 0
    for tb in range(9):
        for p in range(3):
            if p == 0 and tb == 0: continue
            r = accr(p, tb)
            t = fr + (k % 8) * 2
            k += 1
            a("v_cvt_pk_bf16_f32 v%d, v%d, v%d" % (t, r, r + 1))
            a("v_cvt_pk_bf16_f32 v%d, v%d, v%d" % (t + 1, r + 2, r + 3))
            a("ds_write_b64 v%d, %s offset:%d" % (vt[6 + (tb & 1)], vr(t, 2), p * 18432 + tb * 1024))
    a("s_waitcnt lgkmcnt(0)")
    a("s_branch %s_attn" % name)

    a("%s_loader:" % name)
    a("s_sub_u32 s34, s3, 4")
    a("v_lshlrev_b32 v1, 2, v0")
    a("s_lshl_b32 s36, s2, 3")
    a("s_lshl_b32 s37, s34, 1")
    a("s_add_u32 s35, s36, s37")
    a("s_lshl_b32 s36, s35, 11")
    for tkn in range(2):
        for e in range(8):
            a("buffer_load_dword v%d, v1, s[48:51], s36 offen offset:%d" % (16 + tkn * 8 + e, tkn * 2048 + e * 256))
    for e in range(8):
        a("buffer_load_dword v%d, v1, s[64:67], 0 offen offset:%d" % (32 + e, e * 256))
    a("v_lshrrev_b32 v40, 3, v0")
    a("v_and_b32 v41, 7, v0")
    a("s_mul_i32 s36, s34, 36")
    a("v_add_u32 v42, s36, v40")
    a("s_lshl_b32 s37, s30, 7")
    a("s_sub_u32 s37, s37, 16")
    for i in range(5):
        a("v_add_u32 v43, %d, v42" % (8 * i))
        a("v_bfe_u32 v44, v43, 1, 3")
        a("v_xor_b32 v44, v44, v41")
        a("v_add_u32 v43, s37, v43")
        a("v_max_i32 v43, 0, v43")
        a("v_lshlrev_b32 v43, 11, v43")
        a("v_lshl_add_u32 v%d, v44, 4, v43" % (2 + i))
    a("s_mov_b32 s36, 6144")
    a("v_mul_lo_u32 v43, v40, s36")
    a("v_bfe_u32 v44, v0, 4, 1")
    a("v_lshlrev_b32 v44, 1, v44")
    a("v_xor_b32 v44, v44, v41")
    a("v_lshl_add_u32 v45, v44, 4, v43")
    a("v_xor_b32 v46, 64, v45")
    a("s_mul_i32 s37, s34, 6")
    for j in range(6):
        a("s_add_u32 s36, s37, %d" % j)
        a("s_and_b32 s40, s36, 7")
        a("s_mul_i32 s40, s40, %d" % (8 * 6144))
        a("s_lshr_b32 s41, s36, 3")
        a("s_lshl_b32 s41, s41, 11")
        a("s_add_u32 s40, s40, s41")
        a("v_add_u32 v%d, s40, v%d" % (7 + j, 45 + (j & 1)))
    a("s_mul_i32 s42, s34, %d" % (36 * 128))
    a("s_mul_i32 s43, s34, 6144")
    a("s_add_u32 s43, s43, 18432")
    a("s_lshl_b32 s45, s31, 7")
    a("s_mul_i32 s46, s32, %d" % rot[0])
    a("s_mul_i32 s36, s33, %d" % rot[1])
    a("s_add_u32 s46, s46, s36")
    a("s_mov_b32 s38, 0")
    a("s_mov_b32 s39, 0")
    def issue():
        rot_stage(a, 39, 46, rot[2], 47)
        a("s_lshl_b32 s40, s47, 7")
        a("s_mul_i32 s41, s47, %d" % (64 * 6144))
        a("s_add_u32 s41, s41, s45")
        a("s_add_u32 s44, s38, s42")
        for i in range(5):
            a("s_add_u32 m0, s44, %d" % (i * 1024))
            if i == 4:
                a("s_mov_b32 exec_hi, 0")
            else:
                a("s_nop 0")
            a("buffer_load_dwordx4 v%d, s[48:51], s40 offen lds" % (2 + i))
        a("s_mov_b64 exec, -1")
        a("s_add_u32 s44, s38, s43")
        for j in range(6):
            a("s_add_u32 m0, s44, %d" % (j * 1024))
            a("s_nop 0")
            a("buffer_load_dwordx4 v%d, s[52:55], s41 offen lds" % (7 + j))
        a("s_add_u32 s38, s38, %d" % STG1)
        a("s_cmp_eq_u32 s38, %d" % (3 * STG1))
        a("s_cselect_b32 s38, 0, s38")
        a("s_add_u32 s39, s39, 1")
    for p in range(2):
        issue()
    a("%s_lloop:" % name)
    a("s_waitcnt vmcnt(11)")
    a("s_barrier")
    issue()
    a("s_cmp_lt_u32 s39, %d" % T)
    a("s_cbranch_scc1 %s_lloop" % name)
    a("s_waitcnt vmcnt(11)")
    a("s_barrier")
    a("s_waitcnt vmcnt(0)")
    a("s_barrier")
    X = 16; GW = 32; F = 40
    a("v_mov_b32 v80, 0x3f803f80")
    for q in range(4):
        a("v_mov_b32 v%d, 0" % (76 + q))
    for e in range(8):
        for tkn in range(2):
            x = X + tkn * 8 + e
            a("v_dot2_f32_bf16 v%d, v%d, v80, v%d" % (76 + tkn, x, 76 + tkn))
            a("v_dot2_f32_bf16 v%d, v%d, v%d, v%d" % (78 + tkn, x, GW + e, 78 + tkn))
            a("v_lshlrev_b32 v%d, 16, v%d" % (F + 16 * tkn + 2 * e, x))
            a("v_and_b32 v%d, 0xffff0000, v%d" % (F + 16 * tkn + 2 * e + 1, x))
    def wave_reduce(regs):
        steps = ["row_shr:1", "row_shr:2", "row_shr:4", "row_shr:8", "row_bcast:15 row_mask:0xa", "row_bcast:31 row_mask:0xc"]
        a("s_nop 2")
        for s in steps:
            for r in regs:
                rm = "" if "row_mask" in s else " row_mask:0xf"
                a("v_add_f32_dpp v%d, v%d, v%d %s%s bank_mask:0xf" % (r, r, r, s, rm))
            if len(regs) < 3:
                a("s_nop 1")
    wave_reduce([76, 77, 78, 79])
    a("s_nop 1")
    for q in range(4):
        a("v_readlane_b32 s%d, v%d, 63" % (72 + q, 76 + q))
    a("s_nop 1")
    a("v_mov_b32 v81, 0x3a800000")
    a("v_mul_f32 v82, s72, v81")
    a("v_mul_f32 v83, s73, v81")
    a("v_mov_b32 v76, 0")
    a("v_mov_b32 v77, 0")
    for tkn in range(2):
        for k in range(16):
            f = F + 16 * tkn + k
            a("v_sub_f32 v%d, v%d, v%d" % (f, f, 82 + tkn))
            a("v_fmac_f32 v%d, v%d, v%d" % (76 + tkn, f, f))
    wave_reduce([76, 77])
    a("s_nop 1")
    a("v_readlane_b32 s76, v76, 63")
    a("v_readlane_b32 s77, v77, 63")
    a("s_nop 1")
    a("v_mov_b32 v84, 0x%x" % f2u(1e-5))
    a("v_fma_f32 v82, s76, v81, v84")
    a("v_fma_f32 v83, s77, v81, v84")
    a("v_rsq_f32 v82, v82")
    a("v_rsq_f32 v83, v83")
    a("v_mov_b32 v85, s74")
    a("v_mov_b32 v86, s75")
    a("v_cmp_eq_u32 vcc, 1, v0")
    a("s_nop 1")
    a("v_cndmask_b32 v85, v85, v86, vcc")
    a("v_mul_f32 v85, 0x%x, v85" % f2u(-LOG2E))
    a("v_exp_f32 v85, v85")
    a("s_nop 0")
    a("v_add_f32 v85, 1.0, v85")
    a("v_rcp_f32 v85, v85")
    a("s_lshl_b32 s36, s35, 2")
    a("s_mov_b64 exec, 3")
    a("buffer_store_dword v85, v1, s[68:71], s36 offen")
    a("s_mov_b64 exec, -1")
    a("v_lshrrev_b32 v86, 3, v0")
    a("v_and_b32 v87, 7, v0")
    a("v_lshlrev_b32 v87, 5, v87")
    a("v_lshl_add_u32 v86, v86, 10, v87")
    a("s_lshr_b32 s36, s2, 2")
    a("s_lshl_b32 s36, s36, 13")
    a("s_and_b32 s37, s2, 3")
    a("s_lshl_b32 s37, s37, 8")
    a("s_add_u32 s36, s36, s37")
    a("s_lshl_b32 s37, s34, 2")
    a("s_add_u32 s36, s36, s37")
    for e in range(8):
        for b in range(2):
            f0 = F + 2 * e + b; f1 = F + 16 + 2 * e + b
            a("v_mul_f32 v%d, v%d, v82" % (f0, f0))
            a("v_mul_f32 v%d, v%d, v83" % (f1, f1))
            a("v_cvt_pk_bf16_f32 v%d, v%d, v%d" % (f0, f0, f1))
            a("buffer_store_dword v%d, v86, s[56:59], s36 offen offset:%d" % (f0, b * 16))
        a("s_add_u32 s36, s36, 0x80000")

    a("%s_attn:" % name)
    a("s_barrier")
    stamp_mid(a, stamp, 2)
    a("s_and_b32 s34, s3, 1")
    a("s_bfe_u32 s35, s3, 0x10001")
    a("s_lshr_b32 s38, s3, 2")
    a("s_lshl_b32 s36, s38, 5")
    a("s_mul_i32 s37, s35, 72")
    a("s_add_u32 s36, s36, s37")
    a("s_sub_u32 s36, s36, 8")
    a("s_lshl_b32 s36, s36, 7")
    a("s_add_u32 s39, s36, %d" % QKV)
    a("s_lshl_b32 s37, s35, 2")
    a("s_add_u32 s37, s37, 4")
    a("s_lshl_b32 s40, s34, 2")
    a("v_and_b32 v1, 15, v0")
    a("v_lshrrev_b32 v2, 4, v0")
    a("v_lshrrev_b32 v3, 1, v1")
    a("v_add_u32 v3, s37, v3")
    a("v_and_b32 v3, 7, v3")
    a("v_add_u32 v4, s40, v2")
    a("v_xor_b32 v4, v4, v3")
    a("v_lshlrev_b32 v4, 4, v4")
    a("v_lshl_add_u32 v4, v1, 7, v4")
    a("v_add_u32 v4, s39, v4")
    a("v_and_b32 v5, 3, v0")
    a("v_bfe_u32 v6, v0, 2, 2")
    a("v_lshrrev_b32 v7, 1, v6")
    a("v_lshl_add_u32 v7, v2, 1, v7")
    a("v_add_u32 v7, s37, v7")
    a("v_and_b32 v7, 7, v7")
    a("v_lshrrev_b32 v8, 1, v5")
    a("v_add_u32 v8, s40, v8")
    a("v_xor_b32 v8, v8, v7")
    a("v_lshlrev_b32 v8, 4, v8")
    a("v_and_b32 v9, 1, v5")
    a("v_lshl_add_u32 v8, v9, 3, v8")
    a("v_lshl_add_u32 v9, v2, 2, v6")
    a("v_lshl_add_u32 v8, v9, 7, v8")
    a("v_add_u32 v8, s39, v8")
    a("v_xor_b32 v9, 32, v8")
    Q = 16; K = 24; V = 36
    for n in range(3):
        a("ds_read_b128 %s, v4 offset:%d" % (vr(K + 4 * n, 4), 18432 + n * 2048))
    for u in range(2):
        a("ds_read_b128 %s, v4 offset:%d" % (vr(Q + 4 * u, 4), (u + 1) * 2048))
    for dt in range(2):
        for n in range(3):
            a("ds_read_b64_tr_b16 %s, v%d offset:%d" % (vr(V + dt * 6 + n * 2, 2), 8 + dt, 2 * 18432 + n * 2048))
    a("v_lshlrev_b32 v10, 2, v2")
    a("v_sub_u32 v10, v1, v10")
    for r in range(4):
        a("v_subrev_u32 v11, %d, v10" % r)
        a("v_cmp_gt_u32 s[%d:%d], 8, v11" % (72 + 2 * r, 73 + 2 * r))
        a("v_add_u32 v11, %d, v10" % (16 - r))
        a("v_cmp_gt_u32 s[%d:%d], 8, v11" % (64 + 2 * r, 65 + 2 * r))
    a("s_or_b32 s36, s30, s38")
    a("s_cmp_eq_u32 s36, 0")
    for r in range(4):
        a("s_cselect_b64 s[%d:%d], 0, s[%d:%d]" % (40 + 2 * r, 41 + 2 * r, 64 + 2 * r, 65 + 2 * r))
    a("v_mov_b32 v12, 0xff800000")
    a("v_mov_b32 v13, 0x%x" % f2u(CS))
    S = 48
    a("s_waitcnt lgkmcnt(6)")
    for u in range(2):
        a("%s %s, %s, %s, 0" % (MF, vr(S + 8 * u, 4), vr(K + 4 * u, 4), vr(Q + 4 * u, 4)))
        a("%s %s, %s, %s, 0" % (MF, vr(S + 8 * u + 4, 4), vr(K + 4 * (u + 1), 4), vr(Q + 4 * u, 4)))
    a("s_nop 7")
    M = 64; TM = 66; SUM = 68; P = 72; O = 80
    for u in range(2):
        pm = 40 if u == 0 else 64
        for r in range(4):
            a("v_cndmask_b32 v%d, v12, v%d, s[%d:%d]" % (S + 8 * u + r, S + 8 * u + r, pm + 2 * r, pm + 2 * r + 1))
            a("v_cndmask_b32 v%d, v12, v%d, s[%d:%d]" % (S + 8 * u + 4 + r, S + 8 * u + 4 + r, 72 + 2 * r, 73 + 2 * r))
    for u in range(2):
        s = S + 8 * u
        a("v_max3_f32 v%d, v%d, v%d, v%d" % (M + u, s, s + 1, s + 2))
        a("v_max3_f32 v%d, v%d, v%d, v%d" % (M + u, M + u, s + 3, s + 4))
        a("v_max3_f32 v%d, v%d, v%d, v%d" % (M + u, M + u, s + 5, s + 6))
        a("v_max_f32 v%d, v%d, v%d" % (M + u, M + u, s + 7))
    def xred(R, op):
        for sw in ("v_permlane16_swap_b32", "v_permlane32_swap_b32"):
            for u in range(2):
                a("v_mov_b32 v%d, v%d" % (TM + u, R + u))
            a("s_nop 1")
            for u in range(2):
                a("%s v%d, v%d" % (sw, R + u, TM + u))
            a("s_nop 1")
            for u in range(2):
                a("%s v%d, v%d, v%d" % (op, R + u, R + u, TM + u))
    xred(M, "v_max_f32")
    for u in range(2):
        a("v_mul_f32 v%d, v%d, v13" % (M + u, M + u))
    for u in range(2):
        for r in range(8):
            s = S + 8 * u + r
            a("v_fma_f32 v%d, v%d, v13, -v%d" % (s, s, M + u))
        for r in range(8):
            s = S + 8 * u + r
            a("v_exp_f32 v%d, v%d" % (s, s))
    for u in range(2):
        s = S + 8 * u
        a("v_add_f32 v%d, v%d, v%d" % (SUM + u, s, s + 1))
        for r in range(2, 8):
            a("v_add_f32 v%d, v%d, v%d" % (SUM + u, SUM + u, s + r))
    xred(SUM, "v_add_f32")
    for u in range(2):
        a("v_rcp_f32 v%d, v%d" % (SUM + u, SUM + u))
    a("s_nop 0")
    for u in range(2):
        for r in range(8):
            s = S + 8 * u + r
            a("v_mul_f32 v%d, v%d, v%d" % (s, s, SUM + u))
        for p in range(4):
            a("v_cvt_pk_bf16_f32 v%d, v%d, v%d" % (P + 4 * u + p, S + 8 * u + 2 * p, S + 8 * u + 2 * p + 1))
    a("s_waitcnt lgkmcnt(0)")
    a("s_nop 1")
    for u in range(2):
        for dt in range(2):
            a("%s %s, %s, %s, 0" % (MF, vr(O + 8 * u + 4 * dt, 4), vr(V + dt * 6 + 2 * u, 4), vr(P + 4 * u, 4)))
    a("v_lshrrev_b32 v3, 3, v1")
    a("v_lshlrev_b32 v3, 10, v3")
    a("v_lshl_add_u32 v3, v2, 8, v3")
    a("v_and_b32 v5, 7, v1")
    a("v_lshl_add_u32 v3, v5, 5, v3")
    a("s_lshl_b32 s36, s30, 18")
    a("s_lshl_b32 s37, s31, 1")
    a("s_add_u32 s37, s37, s34")
    a("s_lshl_b32 s37, s37, 13")
    a("s_add_u32 s36, s36, s37")
    a("s_lshl_b32 s37, s38, 12")
    a("s_add_u32 s36, s36, s37")
    a("s_lshl_b32 s37, s35, 4")
    a("s_add_u32 s36, s36, s37")
    a("s_nop 3")
    for u in range(2):
        for p in range(4):
            a("v_cvt_pk_bf16_f32 v%d, v%d, v%d" % (S + 4 * u + p, O + 8 * u + 2 * p, O + 8 * u + 2 * p + 1))
        a("buffer_store_dwordx4 %s, v3, s[60:63], s36 offen offset:%d" % (vr(S + 4 * u, 4), u * 2048))
    stamp_end(a, stamp, 0, 100)
    a("%s_end:" % name)
    a("s_endpgm")
    kernel_desc(a, name, 256)
    return (256, 512, 3 * STG1)
```

```python
from asmlib import *
from core import *

C1 = -2.0 * 0.7978845608028654 * 1.4426950408889634
C2 = C1 * 0.044715
LOG2E = 1.4426950408889634
CS = (32.0 ** -0.5) * LOG2E

def stamp_begin(a, on):
    if on: a("s_memrealtime s[90:91]")
def stamp_mid(a, on, k):
    if on:
        a("s_memrealtime s[%d:%d]" % (92 + 2 * k, 93 + 2 * k))
        a("s_waitcnt lgkmcnt(0)")
def stamp_end(a, on, kidx, v):
    if on:
        a("s_waitcnt vmcnt(0)")
        a("s_memrealtime s[98:99]")
        a("s_waitcnt lgkmcnt(0)")
        srd(a, 84, 26, 0x100000, WS_ST + kidx * 0x10000)
        a("s_lshl_b32 s36, s2, 3")
        a("s_add_u32 s36, s36, s3")
        a("s_lshl_b32 s36, s36, 5")
        for i, s in enumerate((90, 92, 94, 96, 98)):
            a("v_mov_b32 v%d, s%d" % (v + i, s))
        a("v_mov_b32 v%d, s36" % (v + 5))
        a("buffer_store_dwordx4 %s, v%d, s[84:87], 0 offen" % (vr(v, 4), v + 5))
        a("buffer_store_dword v%d, v%d, s[84:87], 0 offen offset:16" % (v + 4, v + 5))

def rot_stage(a, st, srot, W, dst):
    a("s_add_u32 s%d, s%d, s%d" % (dst, st, srot))
    a("s_and_b32 s%d, s%d, %d" % (dst, dst, W - 1))
    a("s_andn2_b32 s36, s%d, %d" % (st, W - 1))
    a("s_or_b32 s%d, s%d, s36" % (dst, dst))

def gen_k2(a, name="k2_kernel", stamp=False, rot=(1, 1, 4)):
    T = 32
    LDW = 7168
    kernel_header(a, name)
    a("s_cmp_ge_u32 s2, 224")
    a("s_cbranch_scc1 %s_end" % name)
    stamp_begin(a, stamp)
    load_ptrs(a)
    a("s_and_b32 s28, s2, 7")
    a("s_lshr_b32 s29, s2, 3")
    a("s_and_b32 s30, s28, 1")
    a("s_lshr_b32 s31, s28, 1")
    a("s_lshl_b32 s30, s30, 2")
    a("s_and_b32 s32, s29, 3")
    a("s_add_u32 s30, s30, s32")
    a("s_mul_i32 s31, s31, 7")
    a("s_lshr_b32 s33, s29, 2")
    a("s_add_u32 s31, s31, s33")
    a("s_waitcnt lgkmcnt(0)")
    srd(a, 48, 12, 2048 * 3584 * 2)
    srd(a, 52, 14, 3584 * 2)
    srd(a, 56, 26, HT_BYTES, WS_HT)
    srd(a, 60, 26, U_BYTES, WS_U)
    a("s_cmp_ge_u32 s3, 4")
    a("s_cbranch_scc1 %s_loader" % name)
    ra = RegAlloc(1, 256)
    g = G128(a, ra)
    vt, fr = g.vt, g.fr
    acc = ra.alloc("acc", 64, 4)
    a("s_and_b32 s34, s3, 1")
    a("s_lshr_b32 s35, s3, 1")
    a("s_lshl_b32 s36, s31, 8")
    a("s_lshl_b32 s37, s34, 7")
    a("s_add_u32 s38, s36, s37")
    a("v_lshrrev_b32 v%d, 4, v0" % vt[0])
    a("v_lshlrev_b32 v%d, 3, v%d" % (vt[0], vt[0]))
    for ia in range(4):
        a("buffer_load_dwordx2 %s, v%d, s[52:55], s38 offen offset:%d" % (vr(fr + ia * 2, 2), vt[0], ia * 32))
    g.setup_lane()
    g.setup_T(0, 'n', 34)
    g.setup_F(1, 35)
    a("s_waitcnt vmcnt(0)")
    for ia in range(4):
        for hh in range(2):
            src = fr + ia * 2 + hh
            for ib in range(4):
                r = acc + (ia * 4 + ib) * 4 + hh * 2
                a("v_lshlrev_b32 v%d, 16, v%d" % (r, src))
                a("v_and_b32 v%d, 0xffff0000, v%d" % (r + 1, src))
    a("s_barrier")
    stamp_mid(a, stamp, 0)
    for r in g.reads(('T', 'F', 'n', 0), 0): a(r)
    g.run(acc, 'T', 'F', 'n', T, None, "%s_cloop" % name, 39)
    stamp_mid(a, stamp, 1)
    a("s_nop 7")
    kc = fr
    for i, v in enumerate((C1, C1, C2, C2, 1.0, 1.0)):
        a("v_mov_b32 v%d, 0x%x" % (kc + i, f2u(v)))
    a("s_mul_i32 s36, s30, %d" % (112 * 8192))
    a("s_lshl_b32 s37, s31, 15")
    a("s_add_u32 s36, s36, s37")
    a("s_lshl_b32 s37, s34, 14")
    a("s_add_u32 s36, s36, s37")
    a("s_lshl_b32 s37, s35, 12")
    a("s_add_u32 s36, s36, s37")
    a("v_lshlrev_b32 v%d, 4, v0" % vt[0])
    tmp = fr + 8
    gi = 0
    for m in range(2):
        for ib in range(4):
            regs = [acc + ((2 * m) * 4 + ib) * 4 + e for e in range(4)] + [acc + ((2 * m + 1) * 4 + ib) * 4 + e for e in range(4)]
            off = m * 8192 + ib * 1024
            tb = tmp + (gi % 3) * 12
            gi += 1
            for p in range(4):
                x = regs[2 * p]; t = tb + 2 * p
                a("v_pk_mul_f32 %s, %s, %s" % (vr(t, 2), vr(x, 2), vr(x, 2)))
                a("v_pk_fma_f32 %s, %s, %s, %s" % (vr(t, 2), vr(t, 2), vr(kc + 2, 2), vr(kc, 2)))
                a("v_pk_mul_f32 %s, %s, %s" % (vr(t, 2), vr(t, 2), vr(x, 2)))
            for e in range(8):
                a("v_exp_f32 v%d, v%d" % (tb + e, tb + e))
            for p in range(4):
                a("v_pk_add_f32 %s, %s, %s" % (vr(tb + 2 * p, 2), vr(tb + 2 * p, 2), vr(kc + 4, 2)))
            for e in range(8):
                a("v_rcp_f32 v%d, v%d" % (tb + e, tb + e))
            for p in range(4):
                a("v_pk_mul_f32 %s, %s, %s" % (vr(tb + 2 * p, 2), vr(tb + 2 * p, 2), vr(regs[2 * p], 2)))
            for p in range(4):
                a("v_cvt_pk_bf16_f32 v%d, v%d, v%d" % (tb + 8 + p, tb + 2 * p, tb + 2 * p + 1))
            a("s_add_u32 s37, s36, %d" % off)
            a("buffer_store_dwordx4 %s, v%d, s[60:63], s37 offen" % (vr(tb + 8, 4), vt[0]))
    stamp_mid(a, stamp, 2)
    stamp_end(a, stamp, 1, fr)
    a("s_endpgm")
    a("%s_loader:" % name)
    a("s_sub_u32 s3, s3, 4")
    L = L128(a)
    vA = L.setup_T(LDW, 'n')
    vB = L.setup_F()
    a("s_mul_i32 s44, s3, %d" % (16 * LDW))
    a("s_lshl_b32 s36, s31, 8")
    a("s_add_u32 s44, s44, s36")
    a("s_lshl_b32 s45, s30, 19")
    a("s_lshl_b32 s42, s3, 12")
    a("s_add_u32 s45, s45, s42")
    a("s_mul_i32 s46, s32, %d" % rot[0])
    a("s_mul_i32 s36, s33, %d" % rot[1])
    a("s_add_u32 s46, s46, s36")
    a("s_mov_b32 s38, 0")
    a("s_mov_b32 s39, 0")
    def issue():
        rot_stage(a, 39, 46, rot[2], 47)
        a("s_mul_i32 s40, s47, %d" % (64 * LDW))
        a("s_add_u32 s40, s40, s44")
        a("s_lshl_b32 s41, s47, 14")
        a("s_add_u32 s41, s41, s45")
        L.issue((vA, 48, 40), (vB, 56, 41), 38, 42)
        a("s_add_u32 s39, s39, 1")
    for p in range(3):
        issue()
    a("%s_lloop:" % name)
    a("s_waitcnt vmcnt(16)")
    a("s_barrier")
    issue()
    a("s_cmp_lt_u32 s39, %d" % T)
    a("s_cbranch_scc1 %s_lloop" % name)
    for p in range(3):
        a("s_waitcnt vmcnt(%d)" % (8 * (2 - p)))
        a("s_barrier")
    a("%s_end:" % name)
    a("s_endpgm")
    kernel_desc(a, name, 256)
    return (224, 512, 131072)

def gen_k3(a, name="k3_kernel", stamp=False, rot=(1, 1, 4)):
    TA, TY = 16, 56
    kernel_header(a, name)
    a("s_cmp_ge_u32 s2, 128")
    a("s_cbranch_scc1 %s_end" % name)
    stamp_begin(a, stamp)
    load_ptrs(a)
    a("s_and_b32 s28, s2, 7")
    a("s_lshr_b32 s29, s2, 3")
    a("s_lshr_b32 s30, s28, 1")
    a("s_lshl_b32 s30, s30, 2")
    a("s_and_b32 s32, s29, 3")
    a("s_add_u32 s30, s30, s32")
    a("s_and_b32 s31, s28, 1")
    a("s_lshl_b32 s31, s31, 2")
    a("s_lshr_b32 s33, s29, 2")
    a("s_add_u32 s31, s31, s33")
    a("s_waitcnt lgkmcnt(0)")
    srd(a, 48, 8, 1024 * 1024 * 2)
    srd(a, 52, 26, O_BYTES, WS_O)
    srd(a, 56, 26, U_BYTES, WS_U)
    srd(a, 60, 16, 3584 * 2048 * 2)
    srd(a, 64, 18, 2048 * 2)
    srd(a, 68, 26, 2048 * 4, WS_G)
    srd(a, 72, 22, 2048 * 1024 * 2)
    a("s_cmp_ge_u32 s3, 4")
    a("s_cbranch_scc1 %s_loader" % name)
    ra = RegAlloc(1, 256)
    g = G128(a, ra)
    vt, fr = g.vt, g.fr
    accA = ra.alloc("accA", 64, 4)
    accY = ra.alloc("accY", 64, 4)
    vg = ra.alloc("g", 8, 2)
    vb = ra.alloc("b2", 8, 2)
    a("s_and_b32 s34, s3, 1")
    a("s_lshr_b32 s35, s3, 1")
    a("s_lshl_b32 s36, s30, 7")
    a("s_lshl_b32 s37, s35, 6")
    a("s_add_u32 s38, s36, s37")
    a("v_and_b32 v%d, 15, v0" % vt[0])
    a("v_add_u32 v%d, s38, v%d" % (vt[0], vt[0]))
    a("v_lshlrev_b32 v%d, 2, v%d" % (vt[1], vt[0]))
    a("v_lshlrev_b32 v%d, 1, v%d" % (vt[2], vt[0]))
    for ib in range(4):
        a("buffer_load_dword v%d, v%d, s[68:71], 0 offen offset:%d" % (vg + 2 * ib, vt[1], ib * 64))
        a("buffer_load_ushort v%d, v%d, s[64:67], 0 offen offset:%d" % (vb + 2 * ib, vt[2], ib * 32))
    g.setup_lane()
    g.setup_T(0, 'u', 34)
    g.setup_F(1, 35)
    g.setup_F(0, 34)
    g.setup_T(1, 'u', 35)
    for i in range(64):
        a("v_mov_b32 v%d, 0" % (accA + i))
        a("v_mov_b32 v%d, 0" % (accY + i))
    a("s_barrier")
    stamp_mid(a, stamp, 0)
    for r in g.reads(('T', 'F', 'u', 0), 0): a(r)
    g.run(accA, 'T', 'F', 'u', TA, ('F', 'T', 'u', 0), "%s_cloopa" % name, 39)
    g.run(accY, 'F', 'T', 'u', TY, None, "%s_cloopy" % name, 39)
    stamp_mid(a, stamp, 1)
    a("s_waitcnt vmcnt(0)")
    for ib in range(4):
        a("v_lshlrev_b32 v%d, 16, v%d" % (vb + 2 * ib, vb + 2 * ib))
        a("v_sub_f32 v%d, 1.0, v%d" % (vg + 2 * ib + 1, vg + 2 * ib))
        a("v_mul_f32 v%d, v%d, v%d" % (vb + 2 * ib, vb + 2 * ib, vg + 2 * ib + 1))
    a("v_and_b32 v%d, 15, v0" % vt[0])
    a("v_add_u32 v%d, s38, v%d" % (vt[0], vt[0]))
    a("v_lshlrev_b32 v%d, 11, v%d" % (vt[0], vt[0]))
    a("v_bfe_u32 v%d, v0, 4, 1" % vt[1])
    a("v_lshl_add_u32 v%d, v%d, 5, v%d" % (vt[0], vt[1], vt[0]))
    a("v_lshrrev_b32 v%d, 5, v0" % vt[1])
    a("v_lshl_add_u32 v%d, v%d, 4, v%d" % (vt[0], vt[1], vt[0]))
    a("s_lshl_b32 s36, s31, 8")
    a("s_lshl_b32 s37, s34, 7")
    a("s_add_u32 s36, s36, s37")
    gi = 0
    for ib in range(4):
        G_ = vg + 2 * ib
        for m in range(2):
            tb = fr + (gi % 4) * 4
            gi += 1
            for h in range(2):
                ia = 2 * m + h
                A_ = accA + (ia * 4 + ib) * 4
                Y_ = accY + (ia * 4 + ib) * 4
                for p in range(2):
                    a("v_pk_fma_f32 %s, %s, %s, %s op_sel:[0,0,0] op_sel_hi:[1,0,0]" % (vr(A_ + 2 * p, 2), vr(A_ + 2 * p, 2), vr(G_, 2), vr(vb + 2 * ib, 2)))
                    a("v_pk_fma_f32 %s, %s, %s, %s op_sel:[0,1,0] op_sel_hi:[1,1,1]" % (vr(A_ + 2 * p, 2), vr(Y_ + 2 * p, 2), vr(G_, 2), vr(A_ + 2 * p, 2)))
                    a("v_cvt_pk_bf16_f32 v%d, v%d, v%d" % (tb + 2 * h + p, A_ + 2 * p, A_ + 2 * p + 1))
            a("s_nop 1")
            a("v_permlane16_swap_b32 v%d, v%d" % (tb, tb + 2))
            a("v_permlane16_swap_b32 v%d, v%d" % (tb + 1, tb + 3))
            a("s_add_u32 s37, s36, %d" % (ib * 16 * 2048))
            a("buffer_store_dwordx4 %s, v%d, s[72:75], s37 offen offset:%d" % (vr(tb, 4), vt[0], m * 64))
    stamp_mid(a, stamp, 2)
    stamp_end(a, stamp, 2, fr + 16)
    a("s_endpgm")
    a("%s_loader:" % name)
    a("s_sub_u32 s3, s3, 4")
    L = L128(a)
    vWo = L.setup_T(2048, 'u')
    vW2 = L.setup_T(4096, 'u')
    vF = L.setup_F()
    a("s_lshl_b32 s42, s3, 12")
    a("s_lshl_b32 s44, s3, 15")
    a("s_lshl_b32 s36, s31, 8")
    a("s_add_u32 s44, s44, s36")
    a("s_lshl_b32 s45, s30, 18")
    a("s_add_u32 s45, s45, s42")
    a("s_mul_i32 s76, s31, %d" % (112 * 8192))
    a("s_add_u32 s76, s76, s42")
    a("s_lshl_b32 s77, s3, 16")
    a("s_lshl_b32 s36, s30, 8")
    a("s_add_u32 s77, s77, s36")
    a("s_mul_i32 s46, s32, %d" % rot[0])
    a("s_mul_i32 s36, s33, %d" % rot[1])
    a("s_add_u32 s46, s46, s36")
    a("s_mov_b32 s38, 0")
    a("s_mov_b32 s39, 0")
    def issue_a():
        rot_stage(a, 39, 46, rot[2], 47)
        a("s_lshl_b32 s40, s47, 17")
        a("s_add_u32 s40, s40, s44")
        a("s_lshl_b32 s41, s47, 14")
        a("s_add_u32 s41, s41, s45")
        L.issue((vWo, 48, 40), (vF, 52, 41), 38, 42)
        a("s_add_u32 s39, s39, 1")
    def issue_y():
        rot_stage(a, 39, 46, rot[2], 47)
        a("s_sub_u32 s47, s47, %d" % TA)
        a("s_lshl_b32 s40, s47, 14")
        a("s_add_u32 s40, s40, s76")
        a("s_lshl_b32 s41, s47, 18")
        a("s_add_u32 s41, s41, s77")
        L.issue((vF, 56, 40), (vW2, 60, 41), 38, 42)
        a("s_add_u32 s39, s39, 1")
    for p in range(3):
        issue_a()
    a("%s_lloopa:" % name)
    a("s_waitcnt vmcnt(16)")
    a("s_barrier")
    issue_a()
    a("s_cmp_lt_u32 s39, %d" % TA)
    a("s_cbranch_scc1 %s_lloopa" % name)
    a("%s_lloopy:" % name)
    a("s_waitcnt vmcnt(16)")
    a("s_barrier")
    issue_y()
    a("s_cmp_lt_u32 s39, %d" % (TA + TY))
    a("s_cbranch_scc1 %s_lloopy" % name)
    for p in range(3):
        a("s_waitcnt vmcnt(%d)" % (8 * (2 - p)))
        a("s_barrier")
    a("%s_end:" % name)
    a("s_endpgm")
    kernel_desc(a, name, 256)
    return (128, 512, 131072)

def build(kernels, header=""):
    a = Asm(); body = Asm()
    body('.amdgcn_target "amdgcn-amd-amdhsa--gfx950"')
    for fn, kw in kernels:
        grid, blk, lds = fn(body, **kw)
        a.lines.append("; @launch kernel=%s grid=(%d,1,1) block=(%d,1,1) lds=%d" % (kw["name"], grid, blk, lds))
    return header + a.text() + body.text()
```

```python
import kern, core, mega, sys
hdr = open("gated_mix__sliding_local_dilated__mixer_token_mlp__prompt.s.ref").read().split("; Override launch")[0]
ks = [(mega.gen_mega, dict(name='mk_kernel', warm=False))]
out = sys.argv[1] if len(sys.argv) > 1 else "gated_mix__sliding_local_dilated__mixer_token_mlp__prompt.s"
open(out, "w").write(kern.build(ks, hdr))
```

```python
from asmlib import *
import struct

WS_HT = 0
WS_U = 0x400000
WS_O = 0xC00000
WS_G = 0x1000000
WS_ST = 0x1100000
WS_X = 0x1200000
HT_BYTES = 2048 * 1024 * 2
U_BYTES = 1024 * 3584 * 2
O_BYTES = 2048 * 1024 * 2
MF = "v_mfma_f32_16x16x32_bf16"

def f2u(x):
    return struct.unpack("<I", struct.pack("<f", x))[0]

def weave(a, mf, fill, per_gap=1, start=0):
    fill = list(fill)
    for i, m in enumerate(mf):
        a(m)
        if i >= start:
            for _ in range(per_gap):
                if fill:
                    a(fill.pop(0))
    for r in fill:
        a(r)

def load_ptrs(a):
    a("s_load_dwordx16 s[4:19], s[0:1], 0")
    a("s_load_dwordx8 s[20:27], s[0:1], 64")
    a("v_lshrrev_b32 v1, 6, v0")
    a("v_and_b32 v0, 63, v0")
    a("v_readfirstlane_b32 s3, v1")

class G128:
    NB = 4
    STG = 32768
    def __init__(self, a, ra):
        self.a = a
        self.ra = ra
        self.vt = [ra.alloc("t%d" % i) for i in range(8)]
        self.aT = {}
        self.aF = {}
        self.fr = ra.alloc("frag", 64, 4)
    def fA(self, s, i): return self.fr + s * 32 + i * 4
    def fB(self, s, i): return self.fr + s * 32 + 16 + i * 4
    def setup_lane(self):
        a, vt = self.a, self.vt
        a("v_and_b32 v%d, 3, v0" % vt[0])
        a("v_bfe_u32 v%d, v0, 2, 2" % vt[1])
        a("v_lshrrev_b32 v%d, 4, v0" % vt[2])
        a("v_and_b32 v%d, 1, v%d" % (vt[5], vt[2]))
        a("v_lshl_add_u32 v%d, v%d, 2, v%d" % (vt[5], vt[5], vt[1]))
        a("v_lshlrev_b32 v%d, 1, v%d" % (vt[5], vt[5]))
        a("v_lshrrev_b32 v%d, 1, v%d" % (vt[4], vt[0]))
        a("v_and_b32 v%d, 1, v%d" % (vt[6], vt[0]))
        a("v_lshlrev_b32 v%d, 3, v%d" % (vt[6], vt[6]))
    def setup_T(self, region, korder, swblk):
        a, vt, ra = self.a, self.vt, self.ra
        regs = [[ra.alloc("aT") for i in range(4)] for bp in range(2)]
        self.aT[(region, korder)] = regs
        a("v_lshl_add_u32 v%d, v%d, %d, v%d" % (vt[3], vt[2], 3 if korder == 'n' else 2, vt[1]))
        a("v_lshl_add_u32 v%d, v%d, 8, v%d" % (vt[3], vt[3], vt[6]))
        a("s_lshl_b32 s36, s%d, 3" % swblk)
        for i in range(4):
            a("s_add_u32 s37, s36, %d" % (2 * i))
            a("v_add_u32 v%d, s37, v%d" % (vt[7], vt[4]))
            a("v_xor_b32 v%d, v%d, v%d" % (vt[7], vt[7], vt[5]))
            a("v_lshl_add_u32 v%d, v%d, 4, v%d" % (regs[0][i], vt[7], vt[3]))
            if region:
                a("v_add_u32 v%d, %d, v%d" % (regs[0][i], 16384, regs[0][i]))
            a("v_add_u32 v%d, %d, v%d" % (regs[1][i], 65536, regs[0][i]))
    def setup_F(self, region, swblk):
        a, vt, ra = self.a, self.vt, self.ra
        regs = [ra.alloc("aF") for bp in range(2)]
        self.aF[region] = regs
        a("s_lshl_b32 s36, s%d, 12" % swblk)
        if region:
            a("s_add_u32 s36, s36, 16384")
        a("v_lshlrev_b32 v%d, 4, v0" % regs[0])
        a("v_add_u32 v%d, s36, v%d" % (regs[0], regs[0]))
        a("v_add_u32 v%d, %d, v%d" % (regs[1], 65536, regs[0]))
    def reads(self, desc, sub):
        tA, tB, ko, buf = desc
        bp, boff = buf >> 1, (buf & 1) * self.STG
        out = []
        for region, ty, ff in ((0, tA, self.fA), (1, tB, self.fB)):
            o = []
            for i in range(4):
                if ty == 'F':
                    o.append("ds_read_b128 %s, v%d offset:%d" % (vr(ff(sub, i), 4), self.aF[region][bp], boff + sub * 8192 + i * 1024))
                else:
                    ad = self.aT[(region, ko)][bp][i]
                    o.append("ds_read_b64_tr_b16 %s, v%d offset:%d" % (vr(ff(sub, i), 2), ad, boff + sub * 8192))
                    o.append("ds_read_b64_tr_b16 %s, v%d offset:%d" % (vr(ff(sub, i) + 2, 2), ad, boff + sub * 8192 + (1024 if ko == 'n' else 4096)))
            out.append(o)
        return out[0] + out[1]
    def mfmas(self, acc, st, zero=False):
        out = []
        for ia in range(4):
            for ib in range(4):
                r = acc + (ia * 4 + ib) * 4
                out.append("%s %s, %s, %s, %s" % (MF, vr(r, 4), vr(self.fA(st, ia), 4), vr(self.fB(st, ib), 4), "0" if zero else vr(r, 4)))
        return out
    def stage(self, acc, cur, nxt, extra0=(), extra1=(), vm0=False):
        a = self.a
        a("s_waitcnt lgkmcnt(0)")
        weave(a, self.mfmas(acc, 0), self.reads(cur, 1) + list(extra0))
        a("s_waitcnt lgkmcnt(0)" + (" vmcnt(0)" if vm0 else ""))
        if nxt is not None:
            a("s_barrier")
        weave(a, self.mfmas(acc, 1), (self.reads(nxt, 0) if nxt is not None else []) + list(extra1))
    def run(self, acc, tA, tB, ko, T, nxt_after, lab, sctr):
        a = self.a
        assert T % 4 == 0
        d = lambda b: (tA, tB, ko, b)
        if T > 4:
            a("s_mov_b32 s%d, 0" % sctr)
            a("%s:" % lab)
            for b in range(4):
                self.stage(acc, d(b), d((b + 1) % 4), extra1=(["s_add_u32 s%d, s%d, 1" % (sctr, sctr), "s_cmp_lt_u32 s%d, %d" % (sctr, T // 4 - 1)] if b == 3 else []))
            a("s_cbranch_scc1 %s" % lab)
        for b in range(4):
            self.stage(acc, d(b), d(b + 1) if b < 3 else nxt_after)

class L128:
    def __init__(self, a):
        self.a = a
        self.nv = 2
    def setup_T(self, ld, korder):
        a = self.a
        regs = [self.nv + i for i in range(4)]
        self.nv += 4
        t0, t1, t2, t3 = 250, 251, 252, 253
        a("v_lshrrev_b32 v%d, 4, v0" % t0)
        a("v_and_b32 v%d, 15, v0" % t1)
        a("s_mov_b32 s36, %d" % ld)
        a("v_mul_lo_u32 v%d, v%d, s36" % (t3, t0))
        for i in range(4):
            hi = (i >> 1) & 1 if korder == 'n' else i & 1
            a("v_lshlrev_b32 v%d, 1, v%d" % (t2, t0))
            if hi:
                a("v_or_b32 v%d, 8, v%d" % (t2, t2))
            a("v_xor_b32 v%d, v%d, v%d" % (t2, t2, t1))
            a("v_lshl_add_u32 v%d, v%d, 4, v%d" % (t2, t2, t3))
            a("v_add_u32 v%d, %d, v%d" % (regs[i], i * (4 * ld - 1024), t2))
        return regs
    def setup_F(self):
        a = self.a
        r = self.nv
        self.nv += 1
        a("v_lshlrev_b32 v%d, 4, v0" % r)
        return [r] * 4
    def issue(self, A, B, sbuf, slw):
        a = self.a
        a("s_add_u32 m0, s%d, s%d" % (sbuf, slw))
        a("s_add_u32 s43, s%d, 16384" % sbuf)
        for i in range(4):
            a("buffer_load_dwordx4 v%d, s[%d:%d], s%d offen offset:%d lds" % (A[0][i], A[1], A[1] + 3, A[2], i * 1024))
        a("s_add_u32 m0, s43, s%d" % slw)
        a("s_add_u32 s%d, s%d, 32768" % (sbuf, sbuf))
        for i in range(4):
            a("buffer_load_dwordx4 v%d, s[%d:%d], s%d offen offset:%d lds" % (B[0][i], B[1], B[1] + 3, B[2], i * 1024))
        a("s_and_b32 s%d, s%d, 0x1ffff" % (sbuf, sbuf))
```

```python
from asmlib import *
from core import *

C1 = -2.0 * 0.7978845608028654 * 1.4426950408889634
C2 = C1 * 0.044715
LOG2E = 1.4426950408889634
CS = (32.0 ** -0.5) * LOG2E
XCH_FLAG = 512 * 16384
XCH_BYTES = XCH_FLAG + 512 * 128

def stamp_begin(a, on):
    if on: a("s_memrealtime s[90:91]")
def stamp_mid(a, on, k):
    if on:
        a("s_memrealtime s[%d:%d]" % (92 + 2 * k, 93 + 2 * k))
        a("s_waitcnt lgkmcnt(0)")
def stamp_end(a, on, kidx, v):
    if on:
        a("s_waitcnt vmcnt(0)")
        a("s_memrealtime s[98:99]")
        a("s_waitcnt lgkmcnt(0)")
        srd(a, 84, 26, 0x100000, WS_ST + kidx * 0x10000)
        a("s_lshl_b32 s36, s2, 3")
        a("s_add_u32 s36, s36, s3")
        a("s_lshl_b32 s36, s36, 5")
        for i, s in enumerate((90, 92, 94, 96, 98)):
            a("v_mov_b32 v%d, s%d" % (v + i, s))
        a("v_mov_b32 v%d, s36" % (v + 5))
        a("buffer_store_dwordx4 %s, v%d, s[84:87], 0 offen" % (vr(v, 4), v + 5))
        a("buffer_store_dword v%d, v%d, s[84:87], 0 offen offset:16" % (v + 4, v + 5))

def rot_stage(a, st, srot, W, dst):
    a("s_add_u32 s%d, s%d, s%d" % (dst, st, srot))
    a("s_and_b32 s%d, s%d, %d" % (dst, dst, W - 1))
    a("s_andn2_b32 s36, s%d, %d" % (st, W - 1))
    a("s_or_b32 s%d, s%d, s36" % (dst, dst))

def gen_k2(a, name="k2_kernel", stamp=False, rot=(1, 1, 4)):
    T = 32
    LDW = 7168
    kernel_header(a, name)
    a("s_cmp_ge_u32 s2, 224")
    a("s_cbranch_scc1 %s_end" % name)
    stamp_begin(a, stamp)
    load_ptrs(a)
    a("s_and_b32 s28, s2, 7")
    a("s_lshr_b32 s29, s2, 3")
    a("s_and_b32 s30, s28, 1")
    a("s_lshr_b32 s31, s28, 1")
    a("s_lshl_b32 s30, s30, 2")
    a("s_and_b32 s32, s29, 3")
    a("s_add_u32 s30, s30, s32")
    a("s_mul_i32 s31, s31, 7")
    a("s_lshr_b32 s33, s29, 2")
    a("s_add_u32 s31, s31, s33")
    a("s_waitcnt lgkmcnt(0)")
    srd(a, 48, 12, 2048 * 3584 * 2)
    srd(a, 52, 14, 3584 * 2)
    srd(a, 56, 26, HT_BYTES, WS_HT)
    srd(a, 60, 26, U_BYTES, WS_U)
    srd(a, 80, 26, XCH_BYTES, WS_X)
    a("s_cmp_lg_u32 s3, 3")
    a("s_cbranch_scc1 %s_nz" % name)
    a("s_cmp_ge_u32 s2, 64")
    a("s_cbranch_scc1 %s_nz" % name)
    a("v_lshlrev_b32 v2, 4, v0")
    a("v_mov_b32 v4, 0")
    a("v_mov_b32 v5, 0")
    a("v_mov_b32 v6, 0")
    a("v_mov_b32 v7, 0")
    a("s_lshl_b32 s36, s2, 10")
    a("s_add_u32 s36, s36, %d" % XCH_FLAG)
    a("buffer_store_dwordx4 v[4:7], v2, s[80:83], s36 offen")
    a("%s_nz:" % name)
    a("s_cmp_ge_u32 s3, 4")
    a("s_cbranch_scc1 %s_loader" % name)
    ra = RegAlloc(1, 256)
    g = G128(a, ra)
    vt, fr = g.vt, g.fr
    acc = ra.alloc("acc", 64, 4)
    a("s_and_b32 s34, s3, 1")
    a("s_lshr_b32 s35, s3, 1")
    a("s_lshl_b32 s36, s31, 8")
    a("s_lshl_b32 s37, s34, 7")
    a("s_add_u32 s38, s36, s37")
    a("v_lshrrev_b32 v%d, 4, v0" % vt[0])
    a("v_lshlrev_b32 v%d, 3, v%d" % (vt[0], vt[0]))
    for ia in range(4):
        a("buffer_load_dwordx2 %s, v%d, s[52:55], s38 offen offset:%d" % (vr(fr + ia * 2, 2), vt[0], ia * 32))
    g.setup_lane()
    g.setup_T(0, 'n', 34)
    g.setup_F(1, 35)
    a("s_waitcnt vmcnt(0)")
    for ia in range(4):
        for hh in range(2):
            src = fr + ia * 2 + hh
            for ib in range(4):
                r = acc + (ia * 4 + ib) * 4 + hh * 2
                a("v_lshlrev_b32 v%d, 16, v%d" % (r, src))
                a("v_and_b32 v%d, 0xffff0000, v%d" % (r + 1, src))
    a("s_barrier")
    stamp_mid(a, stamp, 0)
    for r in g.reads(('T', 'F', 'n', 0), 0): a(r)
    g.run(acc, 'T', 'F', 'n', T, None, "%s_cloop" % name, 39)
    stamp_mid(a, stamp, 1)
    a("s_nop 7")
    kc = fr
    for i, v in enumerate((C1, C1, C2, C2, 1.0, 1.0)):
        a("v_mov_b32 v%d, 0x%x" % (kc + i, f2u(v)))
    a("s_mul_i32 s36, s30, %d" % (112 * 8192))
    a("s_lshl_b32 s37, s31, 15")
    a("s_add_u32 s36, s36, s37")
    a("s_lshl_b32 s37, s34, 14")
    a("s_add_u32 s36, s36, s37")
    a("s_lshl_b32 s37, s35, 12")
    a("s_add_u32 s36, s36, s37")
    a("v_lshlrev_b32 v%d, 4, v0" % vt[0])
    tmp = fr + 8
    gi = 0
    for m in range(2):
        for ib in range(4):
            regs = [acc + ((2 * m) * 4 + ib) * 4 + e for e in range(4)] + [acc + ((2 * m + 1) * 4 + ib) * 4 + e for e in range(4)]
            off = m * 8192 + ib * 1024
            tb = tmp + (gi % 3) * 12
            gi += 1
            for p in range(4):
                x = regs[2 * p]; t = tb + 2 * p
                a("v_pk_mul_f32 %s, %s, %s" % (vr(t, 2), vr(x, 2), vr(x, 2)))
                a("v_pk_fma_f32 %s, %s, %s, %s" % (vr(t, 2), vr(t, 2), vr(kc + 2, 2), vr(kc, 2)))
                a("v_pk_mul_f32 %s, %s, %s" % (vr(t, 2), vr(t, 2), vr(x, 2)))
            for e in range(8):
                a("v_exp_f32 v%d, v%d" % (tb + e, tb + e))
            for p in range(4):
                a("v_pk_add_f32 %s, %s, %s" % (vr(tb + 2 * p, 2), vr(tb + 2 * p, 2), vr(kc + 4, 2)))
            for e in range(8):
                a("v_rcp_f32 v%d, v%d" % (tb + e, tb + e))
            for p in range(4):
                a("v_pk_mul_f32 %s, %s, %s" % (vr(tb + 2 * p, 2), vr(tb + 2 * p, 2), vr(regs[2 * p], 2)))
            for p in range(4):
                a("v_cvt_pk_bf16_f32 v%d, v%d, v%d" % (tb + 8 + p, tb + 2 * p, tb + 2 * p + 1))
            a("s_add_u32 s37, s36, %d" % off)
            a("buffer_store_dwordx4 %s, v%d, s[60:63], s37 offen" % (vr(tb + 8, 4), vt[0]))
    stamp_mid(a, stamp, 2)
    stamp_end(a, stamp, 1, fr)
    a("s_endpgm")
    a("%s_loader:" % name)
    a("s_sub_u32 s3, s3, 4")
    L = L128(a)
    vA = L.setup_T(LDW, 'n')
    vB = L.setup_F()
    a("s_mul_i32 s44, s3, %d" % (16 * LDW))
    a("s_lshl_b32 s36, s31, 8")
    a("s_add_u32 s44, s44, s36")
    a("s_lshl_b32 s45, s30, 19")
    a("s_lshl_b32 s42, s3, 12")
    a("s_add_u32 s45, s45, s42")
    a("s_mul_i32 s46, s32, %d" % rot[0])
    a("s_mul_i32 s36, s33, %d" % rot[1])
    a("s_add_u32 s46, s46, s36")
    a("s_mov_b32 s38, 0")
    a("s_mov_b32 s39, 0")
    def issue():
        rot_stage(a, 39, 46, rot[2], 47)
        a("s_mul_i32 s40, s47, %d" % (64 * LDW))
        a("s_add_u32 s40, s40, s44")
        a("s_lshl_b32 s41, s47, 14")
        a("s_add_u32 s41, s41, s45")
        L.issue((vA, 48, 40), (vB, 56, 41), 38, 42)
        a("s_add_u32 s39, s39, 1")
    for p in range(3):
        issue()
    a("%s_lloop:" % name)
    a("s_waitcnt vmcnt(16)")
    a("s_barrier")
    issue()
    a("s_cmp_lt_u32 s39, %d" % T)
    a("s_cbranch_scc1 %s_lloop" % name)
    for p in range(3):
        a("s_waitcnt vmcnt(%d)" % (8 * (2 - p)))
        a("s_barrier")
    a("%s_end:" % name)
    a("s_endpgm")
    kernel_desc(a, name, 256)
    return (224, 512, 131072)

def gen_k3(a, name="k3_kernel", stamp=False, rot=(1, 1, 4)):
    TA, TY = 16, 56
    kernel_header(a, name)
    a("s_cmp_ge_u32 s2, 128")
    a("s_cbranch_scc1 %s_end" % name)
    stamp_begin(a, stamp)
    load_ptrs(a)
    a("s_and_b32 s28, s2, 7")
    a("s_lshr_b32 s29, s2, 3")
    a("s_lshr_b32 s30, s28, 1")
    a("s_lshl_b32 s30, s30, 2")
    a("s_and_b32 s32, s29, 3")
    a("s_add_u32 s30, s30, s32")
    a("s_and_b32 s31, s28, 1")
    a("s_lshl_b32 s31, s31, 2")
    a("s_lshr_b32 s33, s29, 2")
    a("s_add_u32 s31, s31, s33")
    a("s_waitcnt lgkmcnt(0)")
    srd(a, 48, 8, 1024 * 1024 * 2)
    srd(a, 52, 26, O_BYTES, WS_O)
    srd(a, 56, 26, U_BYTES, WS_U)
    srd(a, 60, 16, 3584 * 2048 * 2)
    srd(a, 64, 18, 2048 * 2)
    srd(a, 68, 26, 2048 * 4, WS_G)
    srd(a, 72, 22, 2048 * 1024 * 2)
    a("s_cmp_ge_u32 s3, 4")
    a("s_cbranch_scc1 %s_loader" % name)
    ra = RegAlloc(1, 256)
    g = G128(a, ra)
    vt, fr = g.vt, g.fr
    accA = ra.alloc("accA", 64, 4)
    accY = ra.alloc("accY", 64, 4)
    vg = ra.alloc("g", 8, 2)
    vb = ra.alloc("b2", 8, 2)
    a("s_and_b32 s34, s3, 1")
    a("s_lshr_b32 s35, s3, 1")
    a("s_lshl_b32 s36, s30, 7")
    a("s_lshl_b32 s37, s35, 6")
    a("s_add_u32 s38, s36, s37")
    a("v_and_b32 v%d, 15, v0" % vt[0])
    a("v_add_u32 v%d, s38, v%d" % (vt[0], vt[0]))
    a("v_lshlrev_b32 v%d, 2, v%d" % (vt[1], vt[0]))
    a("v_lshlrev_b32 v%d, 1, v%d" % (vt[2], vt[0]))
    for ib in range(4):
        a("buffer_load_dword v%d, v%d, s[68:71], 0 offen offset:%d" % (vg + 2 * ib, vt[1], ib * 64))
        a("buffer_load_ushort v%d, v%d, s[64:67], 0 offen offset:%d" % (vb + 2 * ib, vt[2], ib * 32))
    g.setup_lane()
    g.setup_T(0, 'u', 34)
    g.setup_F(1, 35)
    g.setup_F(0, 34)
    g.setup_T(1, 'u', 35)
    for i in range(64):
        a("v_mov_b32 v%d, 0" % (accA + i))
        a("v_mov_b32 v%d, 0" % (accY + i))
    a("s_barrier")
    stamp_mid(a, stamp, 0)
    for r in g.reads(('T', 'F', 'u', 0), 0): a(r)
    g.run(accA, 'T', 'F', 'u', TA, ('F', 'T', 'u', 0), "%s_cloopa" % name, 39)
    g.run(accY, 'F', 'T', 'u', TY, None, "%s_cloopy" % name, 39)
    stamp_mid(a, stamp, 1)
    a("s_waitcnt vmcnt(0)")
    for ib in range(4):
        a("v_lshlrev_b32 v%d, 16, v%d" % (vb + 2 * ib, vb + 2 * ib))
        a("v_sub_f32 v%d, 1.0, v%d" % (vg + 2 * ib + 1, vg + 2 * ib))
        a("v_mul_f32 v%d, v%d, v%d" % (vb + 2 * ib, vb + 2 * ib, vg + 2 * ib + 1))
    a("v_and_b32 v%d, 15, v0" % vt[0])
    a("v_add_u32 v%d, s38, v%d" % (vt[0], vt[0]))
    a("v_lshlrev_b32 v%d, 11, v%d" % (vt[0], vt[0]))
    a("v_bfe_u32 v%d, v0, 4, 1" % vt[1])
    a("v_lshl_add_u32 v%d, v%d, 5, v%d" % (vt[0], vt[1], vt[0]))
    a("v_lshrrev_b32 v%d, 5, v0" % vt[1])
    a("v_lshl_add_u32 v%d, v%d, 4, v%d" % (vt[0], vt[1], vt[0]))
    a("s_lshl_b32 s36, s31, 8")
    a("s_lshl_b32 s37, s34, 7")
    a("s_add_u32 s36, s36, s37")
    gi = 0
    for ib in range(4):
        G_ = vg + 2 * ib
        for m in range(2):
            tb = fr + (gi % 4) * 4
            gi += 1
            for h in range(2):
                ia = 2 * m + h
                A_ = accA + (ia * 4 + ib) * 4
                Y_ = accY + (ia * 4 + ib) * 4
                for p in range(2):
                    a("v_pk_fma_f32 %s, %s, %s, %s op_sel:[0,0,0] op_sel_hi:[1,0,0]" % (vr(A_ + 2 * p, 2), vr(A_ + 2 * p, 2), vr(G_, 2), vr(vb + 2 * ib, 2)))
                    a("v_pk_fma_f32 %s, %s, %s, %s op_sel:[0,1,0] op_sel_hi:[1,1,1]" % (vr(A_ + 2 * p, 2), vr(Y_ + 2 * p, 2), vr(G_, 2), vr(A_ + 2 * p, 2)))
                    a("v_cvt_pk_bf16_f32 v%d, v%d, v%d" % (tb + 2 * h + p, A_ + 2 * p, A_ + 2 * p + 1))
            a("s_nop 1")
            a("v_permlane16_swap_b32 v%d, v%d" % (tb, tb + 2))
            a("v_permlane16_swap_b32 v%d, v%d" % (tb + 1, tb + 3))
            a("s_add_u32 s37, s36, %d" % (ib * 16 * 2048))
            a("buffer_store_dwordx4 %s, v%d, s[72:75], s37 offen offset:%d" % (vr(tb, 4), vt[0], m * 64))
    stamp_mid(a, stamp, 2)
    stamp_end(a, stamp, 2, fr + 16)
    a("s_endpgm")
    a("%s_loader:" % name)
    a("s_sub_u32 s3, s3, 4")
    L = L128(a)
    vWo = L.setup_T(2048, 'u')
    vW2 = L.setup_T(4096, 'u')
    vF = L.setup_F()
    a("s_lshl_b32 s42, s3, 12")
    a("s_lshl_b32 s44, s3, 15")
    a("s_lshl_b32 s36, s31, 8")
    a("s_add_u32 s44, s44, s36")
    a("s_lshl_b32 s45, s30, 18")
    a("s_add_u32 s45, s45, s42")
    a("s_mul_i32 s76, s31, %d" % (112 * 8192))
    a("s_add_u32 s76, s76, s42")
    a("s_lshl_b32 s77, s3, 16")
    a("s_lshl_b32 s36, s30, 8")
    a("s_add_u32 s77, s77, s36")
    a("s_mul_i32 s46, s32, %d" % rot[0])
    a("s_mul_i32 s36, s33, %d" % rot[1])
    a("s_add_u32 s46, s46, s36")
    a("s_mov_b32 s38, 0")
    a("s_mov_b32 s39, 0")
    def issue_a():
        rot_stage(a, 39, 46, rot[2], 47)
        a("s_lshl_b32 s40, s47, 17")
        a("s_add_u32 s40, s40, s44")
        a("s_lshl_b32 s41, s47, 14")
        a("s_add_u32 s41, s41, s45")
        L.issue((vWo, 48, 40), (vF, 52, 41), 38, 42)
        a("s_add_u32 s39, s39, 1")
    def issue_y():
        rot_stage(a, 39, 46, rot[2], 47)
        a("s_sub_u32 s47, s47, %d" % TA)
        a("s_lshl_b32 s40, s47, 14")
        a("s_add_u32 s40, s40, s76")
        a("s_lshl_b32 s41, s47, 18")
        a("s_add_u32 s41, s41, s77")
        L.issue((vF, 56, 40), (vW2, 60, 41), 38, 42)
        a("s_add_u32 s39, s39, 1")
    for p in range(3):
        issue_a()
    a("%s_lloopa:" % name)
    a("s_waitcnt vmcnt(16)")
    a("s_barrier")
    issue_a()
    a("s_cmp_lt_u32 s39, %d" % TA)
    a("s_cbranch_scc1 %s_lloopa" % name)
    a("%s_lloopy:" % name)
    a("s_waitcnt vmcnt(16)")
    a("s_barrier")
    issue_y()
    a("s_cmp_lt_u32 s39, %d" % (TA + TY))
    a("s_cbranch_scc1 %s_lloopy" % name)
    for p in range(3):
        a("s_waitcnt vmcnt(%d)" % (8 * (2 - p)))
        a("s_barrier")
    a("%s_end:" % name)
    a("s_endpgm")
    kernel_desc(a, name, 256)
    return (128, 512, 131072)

def gen_k3s(a, name="k3s_kernel", stamp=False, rot=(1, 1, 4)):
    TA, TY = 8, 28
    kernel_header(a, name)
    a("s_cmp_ge_u32 s2, 256")
    a("s_cbranch_scc1 %s_end" % name)
    stamp_begin(a, stamp)
    load_ptrs(a)
    a("s_and_b32 s28, s2, 7")
    a("s_lshr_b32 s29, s2, 3")
    a("s_and_b32 s78, s28, 1")
    a("s_bfe_u32 s30, s28, 0x10001")
    a("s_lshl_b32 s30, s30, 3")
    a("s_and_b32 s32, s29, 7")
    a("s_add_u32 s30, s30, s32")
    a("s_lshr_b32 s31, s28, 2")
    a("s_lshl_b32 s31, s31, 2")
    a("s_lshr_b32 s33, s29, 3")
    a("s_add_u32 s31, s31, s33")
    a("s_waitcnt lgkmcnt(0)")
    srd(a, 48, 8, 1024 * 1024 * 2)
    srd(a, 52, 26, O_BYTES, WS_O)
    srd(a, 56, 26, U_BYTES, WS_U)
    srd(a, 60, 16, 3584 * 2048 * 2)
    srd(a, 64, 18, 2048 * 2)
    srd(a, 68, 26, 2048 * 4, WS_G)
    srd(a, 72, 22, 2048 * 1024 * 2)
    srd(a, 80, 26, XCH_BYTES, WS_X)
    a("s_cmp_ge_u32 s3, 4")
    a("s_cbranch_scc1 %s_loader" % name)
    ra = RegAlloc(1, 256)
    g = G128(a, ra)
    vt, fr = g.vt, g.fr
    accA = ra.alloc("accA", 64, 4)
    accY = ra.alloc("accY", 64, 4)
    vg = ra.alloc("g", 8, 2)
    vb = ra.alloc("b2", 8, 2)
    a("s_and_b32 s34, s3, 1")
    a("s_lshr_b32 s35, s3, 1")
    a("s_lshl_b32 s36, s30, 7")
    a("s_lshl_b32 s37, s35, 6")
    a("s_add_u32 s38, s36, s37")
    a("v_and_b32 v%d, 15, v0" % vt[0])
    a("v_add_u32 v%d, s38, v%d" % (vt[0], vt[0]))
    a("v_lshlrev_b32 v%d, 2, v%d" % (vt[1], vt[0]))
    a("v_lshlrev_b32 v%d, 1, v%d" % (vt[2], vt[0]))
    for ib in range(4):
        a("buffer_load_dword v%d, v%d, s[68:71], 0 offen offset:%d" % (vg + 2 * ib, vt[1], ib * 64))
        a("buffer_load_ushort v%d, v%d, s[64:67], 0 offen offset:%d" % (vb + 2 * ib, vt[2], ib * 32))
    g.setup_lane()
    g.setup_T(0, 'u', 34)
    g.setup_F(1, 35)
    g.setup_F(0, 34)
    g.setup_T(1, 'u', 35)
    for i in range(64):
        a("v_mov_b32 v%d, 0" % (accA + i))
        a("v_mov_b32 v%d, 0" % (accY + i))
    a("s_barrier")
    stamp_mid(a, stamp, 0)
    for r in g.reads(('T', 'F', 'u', 0), 0): a(r)
    g.run(accA, 'T', 'F', 'u', TA, ('F', 'T', 'u', 0), "%s_cloopa" % name, 39)
    g.run(accY, 'F', 'T', 'u', TY, None, "%s_cloopy" % name, 39)
    stamp_mid(a, stamp, 1)
    a("s_waitcnt vmcnt(0)")
    for ib in range(4):
        a("v_lshlrev_b32 v%d, 16, v%d" % (vb + 2 * ib, vb + 2 * ib))
        a("v_sub_f32 v%d, 1.0, v%d" % (vg + 2 * ib + 1, vg + 2 * ib))
        a("v_mul_f32 v%d, v%d, v%d" % (vb + 2 * ib, vb + 2 * ib, vg + 2 * ib + 1))
    a("s_lshl_b32 s36, s30, 3")
    a("s_add_u32 s36, s36, s31")
    a("s_lshl_b32 s36, s36, 1")
    a("s_add_u32 s36, s36, s34")
    a("s_lshl_b32 s36, s36, 1")
    a("s_add_u32 s36, s36, s35")
    a("s_lshl_b32 s40, s36, 14")
    a("s_lshl_b32 s41, s36, 7")
    a("s_add_u32 s41, s41, %d" % XCH_FLAG)
    a("v_lshlrev_b32 v%d, 4, v0" % vt[3])
    a("s_cmp_eq_u32 s34, s78")
    a("s_cbranch_scc1 %s_recv" % name)
    for ib in range(4):
        G_ = vg + 2 * ib
        for ia in range(4):
            A_ = accA + (ia * 4 + ib) * 4
            Y_ = accY + (ia * 4 + ib) * 4
            for p in range(2):
                a("v_pk_mul_f32 %s, %s, %s op_sel:[0,0] op_sel_hi:[1,0]" % (vr(A_ + 2 * p, 2), vr(A_ + 2 * p, 2), vr(G_, 2)))
                a("v_pk_fma_f32 %s, %s, %s, %s op_sel:[0,1,0] op_sel_hi:[1,1,1]" % (vr(A_ + 2 * p, 2), vr(Y_ + 2 * p, 2), vr(G_, 2), vr(A_ + 2 * p, 2)))
            k = ia * 4 + ib
            a("s_add_u32 s37, s40, %d" % ((k >> 2) * 4096))
            a("buffer_store_dwordx4 %s, v%d, s[80:83], s37 offen offset:%d sc0 sc1" % (vr(A_, 4), vt[3], (k & 3) * 1024))
    a("v_mov_b32 v%d, 1" % vt[4])
    a("v_mov_b32 v%d, 0" % vt[5])
    a("s_waitcnt vmcnt(0)")
    a("s_mov_b64 exec, 1")
    a("buffer_atomic_add v%d, v%d, s[80:83], s41 offen sc1" % (vt[4], vt[5]))
    a("s_mov_b64 exec, -1")
    stamp_mid(a, stamp, 2)
    stamp_end(a, stamp, 2, fr + 16)
    a("s_endpgm")
    a("%s_recv:" % name)
    for ib in range(4):
        G_ = vg + 2 * ib
        for ia in range(4):
            A_ = accA + (ia * 4 + ib) * 4
            Y_ = accY + (ia * 4 + ib) * 4
            for p in range(2):
                a("v_pk_fma_f32 %s, %s, %s, %s op_sel:[0,0,0] op_sel_hi:[1,0,0]" % (vr(A_ + 2 * p, 2), vr(A_ + 2 * p, 2), vr(G_, 2), vr(vb + 2 * ib, 2)))
                a("v_pk_fma_f32 %s, %s, %s, %s op_sel:[0,1,0] op_sel_hi:[1,1,1]" % (vr(A_ + 2 * p, 2), vr(Y_ + 2 * p, 2), vr(G_, 2), vr(A_ + 2 * p, 2)))
    a("v_and_b32 v%d, 15, v0" % vt[0])
    a("v_add_u32 v%d, s38, v%d" % (vt[0], vt[0]))
    a("v_lshlrev_b32 v%d, 11, v%d" % (vt[0], vt[0]))
    a("v_bfe_u32 v%d, v0, 4, 1" % vt[1])
    a("v_lshl_add_u32 v%d, v%d, 5, v%d" % (vt[0], vt[1], vt[0]))
    a("v_lshrrev_b32 v%d, 5, v0" % vt[1])
    a("v_lshl_add_u32 v%d, v%d, 4, v%d" % (vt[0], vt[1], vt[0]))
    a("s_lshl_b32 s36, s31, 8")
    a("s_lshl_b32 s37, s34, 7")
    a("s_add_u32 s36, s36, s37")
    a("v_mov_b32 v%d, 0" % vt[5])
    a("%s_poll:" % name)
    a("buffer_load_dword v%d, v%d, s[80:83], s41 offen sc0 sc1" % (vt[4], vt[5]))
    a("s_waitcnt vmcnt(0)")
    a("v_readfirstlane_b32 s37, v%d" % vt[4])
    a("s_cmp_lg_u32 s37, 0")
    a("s_cbranch_scc1 %s_got" % name)
    a("s_sleep 2")
    a("s_branch %s_poll" % name)
    a("%s_got:" % name)
    for k in range(16):
        ia, ib = k >> 2, k & 3
        a("s_add_u32 s37, s40, %d" % ((k >> 2) * 4096))
        a("buffer_load_dwordx4 %s, v%d, s[80:83], s37 offen offset:%d sc0 sc1" % (vr(accY + (ia * 4 + ib) * 4, 4), vt[3], (k & 3) * 1024))
    gi = 0
    for m in range(2):
        a("s_waitcnt vmcnt(%d)" % (8 if m == 0 else 4))
        for ib in range(4):
            tb = fr + (gi % 4) * 4
            gi += 1
            for h in range(2):
                ia = 2 * m + h
                A_ = accA + (ia * 4 + ib) * 4
                Y_ = accY + (ia * 4 + ib) * 4
                for p in range(2):
                    a("v_pk_add_f32 %s, %s, %s" % (vr(A_ + 2 * p, 2), vr(A_ + 2 * p, 2), vr(Y_ + 2 * p, 2)))
                    a("v_cvt_pk_bf16_f32 v%d, v%d, v%d" % (tb + 2 * h + p, A_ + 2 * p, A_ + 2 * p + 1))
            a("s_nop 1")
            a("v_permlane16_swap_b32 v%d, v%d" % (tb, tb + 2))
            a("v_permlane16_swap_b32 v%d, v%d" % (tb + 1, tb + 3))
            a("s_add_u32 s37, s36, %d" % (ib * 16 * 2048))
            a("buffer_store_dwordx4 %s, v%d, s[72:75], s37 offen offset:%d" % (vr(tb, 4), vt[0], m * 64))
    stamp_mid(a, stamp, 2)
    stamp_end(a, stamp, 2, fr + 16)
    a("s_endpgm")
    a("%s_loader:" % name)
    a("s_sub_u32 s3, s3, 4")
    L = L128(a)
    vWo = L.setup_T(2048, 'u')
    vW2 = L.setup_T(4096, 'u')
    vF = L.setup_F()
    a("s_lshl_b32 s42, s3, 12")
    a("s_lshl_b32 s44, s3, 15")
    a("s_lshl_b32 s36, s31, 8")
    a("s_add_u32 s44, s44, s36")
    a("s_lshl_b32 s45, s30, 18")
    a("s_add_u32 s45, s45, s42")
    a("s_mul_i32 s76, s31, %d" % (112 * 8192))
    a("s_add_u32 s76, s76, s42")
    a("s_lshl_b32 s77, s3, 16")
    a("s_lshl_b32 s36, s30, 8")
    a("s_add_u32 s77, s77, s36")
    a("s_lshl_b32 s36, s78, 20")
    a("s_add_u32 s44, s44, s36")
    a("s_lshl_b32 s36, s78, 17")
    a("s_add_u32 s45, s45, s36")
    a("s_mul_i32 s36, s78, %d" % (56 * 8192))
    a("s_add_u32 s76, s76, s36")
    a("s_mul_i32 s36, s78, %d" % (1792 * 4096))
    a("s_add_u32 s77, s77, s36")
    a("s_mul_i32 s46, s32, %d" % rot[0])
    a("s_mul_i32 s36, s33, %d" % rot[1])
    a("s_add_u32 s46, s46, s36")
    a("s_mov_b32 s38, 0")
    a("s_mov_b32 s39, 0")
    def issue_a():
        rot_stage(a, 39, 46, rot[2], 47)
        a("s_lshl_b32 s40, s47, 17")
        a("s_add_u32 s40, s40, s44")
        a("s_lshl_b32 s41, s47, 14")
        a("s_add_u32 s41, s41, s45")
        L.issue((vWo, 48, 40), (vF, 52, 41), 38, 42)
        a("s_add_u32 s39, s39, 1")
    def issue_y():
        rot_stage(a, 39, 46, rot[2], 47)
        a("s_sub_u32 s47, s47, %d" % TA)
        a("s_lshl_b32 s40, s47, 14")
        a("s_add_u32 s40, s40, s76")
        a("s_lshl_b32 s41, s47, 18")
        a("s_add_u32 s41, s41, s77")
        L.issue((vF, 56, 40), (vW2, 60, 41), 38, 42)
        a("s_add_u32 s39, s39, 1")
    for p in range(3):
        issue_a()
    a("%s_lloopa:" % name)
    a("s_waitcnt vmcnt(16)")
    a("s_barrier")
    issue_a()
    a("s_cmp_lt_u32 s39, %d" % TA)
    a("s_cbranch_scc1 %s_lloopa" % name)
    a("%s_lloopy:" % name)
    a("s_waitcnt vmcnt(16)")
    a("s_barrier")
    issue_y()
    a("s_cmp_lt_u32 s39, %d" % (TA + TY))
    a("s_cbranch_scc1 %s_lloopy" % name)
    for p in range(3):
        a("s_waitcnt vmcnt(%d)" % (8 * (2 - p)))
        a("s_barrier")
    a("%s_end:" % name)
    a("s_endpgm")
    kernel_desc(a, name, 256)
    return (256, 512, 131072)

def build(kernels, header=""):
    a = Asm(); body = Asm()
    body('.amdgcn_target "amdgcn-amd-amdhsa--gfx950"')
    for fn, kw in kernels:
        grid, blk, lds = fn(body, **kw)
        a.lines.append("; @launch kernel=%s grid=(%d,1,1) block=(%d,1,1) lds=%d" % (kw["name"], grid, blk, lds))
    return header + a.text() + body.text()
```

```python
from asmlib import *
from core import *
from kern import rot_stage, CS, LOG2E, C1, C2, XCH_FLAG, XCH_BYTES

STG1 = 43008
LDS_TOTAL = 163840
AUX = LDS_TOTAL - 512
QKV = AUX - 3 * 18432
WT = " sc0 sc1"

S_WS, S_X, S_WQKV, S_GATE, S_W1, S_B1, S_WO, S_W2, S_B2, S_OUT, S_DBG = 40, 44, 48, 52, 56, 60, 64, 68, 72, 76, 80
WS_MB = WS_X + XCH_BYTES
WS_END = WS_MB + 256 * 128
def R(n): return "s[%d:%d]" % (n, n + 3)

class Stamps:
    def __init__(self, a, on): self.a, self.on, self.n = a, on, 0
    def mark(self, idx):
        if self.on:
            self.a("s_memrealtime s[100:101]")
            self.a("s_waitcnt lgkmcnt(0)")
            self.a("s_mov_b32 s%d, s100" % (88 + idx))
    def dump(self, v):
        a = self.a
        if self.on:
            a("s_waitcnt vmcnt(0)")
            self.mark(11)
            a("s_lshl_b32 s36, s2, 3")
            a("s_add_u32 s36, s36, s3")
            a("s_lshl_b32 s36, s36, 6")
            a("s_add_u32 s36, s36, %d" % WS_ST)
            for i in range(12):
                a("v_mov_b32 v%d, s%d" % (v + i, 88 + i))
            a("v_mov_b32 v%d, 0" % (v + 12))
            for q in range(3):
                a("buffer_store_dwordx4 %s, v%d, s[40:43], s36 offen offset:%d" % (vr(v + 4 * q, 4), v + 12, 16 * q))

def signal(a, sidx, vt0, vt1, lab):
    a("s_cmp_lg_u32 s3, 0")
    a("s_cbranch_scc1 %s" % lab)
    a("s_lshl_b32 s36, s%d, 2" % sidx)
    a("v_mov_b32 v%d, 1" % vt0)
    a("v_mov_b32 v%d, 0" % vt1)
    a("s_mov_b64 exec, 1")
    a("buffer_atomic_add v%d, v%d, s[80:83], s36 offen sc1" % (vt0, vt1))
    a("s_mov_b64 exec, -1")
    a("%s:" % lab)

def poll_issue(a, vdst, voff, soff, srd_=S_WS):
    a("buffer_load_dword v%d, v%d, %s, s%d offen%s" % (vdst, voff, R(srd_), soff, WT))

def push(a, vaddr, v1, nl, lab):
    a("s_cmp_lg_u32 s3, 0")
    a("s_cbranch_scc1 %s" % lab)
    a("v_mov_b32 v%d, 1" % v1)
    a("s_mov_b64 exec, 0x%x" % ((1 << nl) - 1))
    a("buffer_store_dword v%d, v%d, %s, 0 offen%s" % (v1, vaddr, R(S_WS), WT))
    a("s_mov_b64 exec, -1")
    a("%s:" % lab)

SPIN_MAX = 0x8000
def poll_wait(a, vdst, voff, soff, target, lab, have=False, srd_=S_WS, sleep=8):
    a("s_mov_b32 s101, 0")
    if have:
        a("v_cmp_ne_u32 vcc, %d, v%d" % (target, vdst))
        a("s_cbranch_vccz %s_ok" % lab)
    a("%s_p:" % lab)
    poll_issue(a, vdst, voff, soff, srd_)
    a("s_add_u32 s101, s101, 1")
    a("s_waitcnt vmcnt(0)")
    a("v_cmp_ne_u32 vcc, %d, v%d" % (target, vdst))
    a("s_cbranch_vccz %s_ok" % lab)
    a("s_sleep %d" % sleep)
    a("s_cmp_lt_u32 s101, %d" % SPIN_MAX)
    a("s_cbranch_scc1 %s_p" % lab)
    a("%s_ok:" % lab)

def map_p1(a):
    a("s_and_b32 s30, s28, 1")
    a("s_lshl_b32 s30, s30, 3")
    a("s_and_b32 s32, s29, 7")
    a("s_add_u32 s30, s30, s32")
    a("s_lshr_b32 s31, s28, 1")
    a("s_lshl_b32 s31, s31, 2")
    a("s_lshr_b32 s33, s29, 3")
    a("s_add_u32 s31, s31, s33")
def map_p2(a):
    a("s_and_b32 s30, s28, 1")
    a("s_lshl_b32 s30, s30, 2")
    a("s_and_b32 s32, s29, 3")
    a("s_add_u32 s30, s30, s32")
    a("s_lshr_b32 s31, s28, 1")
    a("s_mul_i32 s31, s31, 7")
    a("s_lshr_b32 s33, s29, 2")
    a("s_add_u32 s31, s31, s33")
def map_p3(a, st, dtl, sl, dl, kh):
    a("s_and_b32 s%d, s28, 1" % kh)
    a("s_bfe_u32 s%d, s28, 0x10001" % st)
    a("s_lshl_b32 s%d, s%d, 3" % (st, st))
    a("s_and_b32 s%d, s29, 7" % sl)
    a("s_add_u32 s%d, s%d, s%d" % (st, st, sl))
    a("s_lshr_b32 s%d, s28, 2" % dtl)
    a("s_lshl_b32 s%d, s%d, 2" % (dtl, dtl))
    a("s_lshr_b32 s%d, s29, 3" % dl)
    a("s_add_u32 s%d, s%d, s%d" % (dtl, dtl, dl))

def wave_reduce(a, regs):
    steps = ["row_shr:1", "row_shr:2", "row_shr:4", "row_shr:8", "row_bcast:15 row_mask:0xa", "row_bcast:31 row_mask:0xc"]
    a("s_nop 2")
    for s in steps:
        for r in regs:
            rm = "" if "row_mask" in s else " row_mask:0xf"
            a("v_add_f32_dpp v%d, v%d, v%d %s%s bank_mask:0xf" % (r, r, r, s, rm))
        if len(regs) < 3:
            a("s_nop 1")

def emit_ln(a, name):
    a("v_lshlrev_b32 v1, 2, v0")
    a("s_lshl_b32 s36, s2, 3")
    a("s_lshl_b32 s37, s3, 1")
    a("s_add_u32 s35, s36, s37")
    a("s_lshl_b32 s38, s35, 11")
    X = 16; GW = 32; F = 40; X2 = 96
    for tkn in range(2):
        for e in range(8):
            a("buffer_load_dword v%d, v1, s[44:47], s38 offen offset:%d" % (X + tkn * 8 + e, tkn * 2048 + e * 256))
    for e in range(8):
        a("buffer_load_dword v%d, v1, s[52:55], 0 offen offset:%d" % (GW + e, e * 256))
    a("v_lshlrev_b32 v2, 3, v0")
    a("s_lshl_b32 s38, s2, 14")
    a("s_lshl_b32 s37, s3, 9")
    a("s_add_u32 s38, s38, s37")
    for t in range(8):
        if t == 2 or t == 4 or t == 6:
            a("s_add_u32 s38, s38, 4096")
        a("buffer_load_dwordx2 %s, v2, s[44:47], s38 offen offset:%d" % (vr(X2 + 2 * t, 2), (t & 1) * 2048))
    a("s_cmp_lg_u32 s3, 3")
    a("s_cbranch_scc1 %s_nz" % name)
    a("s_cmp_ge_u32 s2, 64")
    a("s_cbranch_scc1 %s_nz" % name)
    a("v_lshlrev_b32 v3, 4, v0")
    for q in range(4):
        a("v_mov_b32 v%d, 0" % (4 + q))
    a("s_lshl_b32 s36, s2, 10")
    a("s_add_u32 s36, s36, %d" % (WS_X + XCH_FLAG))
    a("buffer_store_dwordx4 v[4:7], v3, s[40:43], s36 offen" + WT)
    a("%s_nz:" % name)
    a("s_cmp_lg_u32 s3, 2")
    a("s_cbranch_scc1 %s_nz2" % name)
    a("v_mov_b32 v4, 0")
    a("s_lshl_b32 s36, s2, 7")
    a("s_add_u32 s36, s36, %d" % WS_MB)
    a("s_mov_b32 exec_hi, 0")
    a("buffer_store_dword v4, v1, s[40:43], s36 offen" + WT)
    a("s_mov_b64 exec, -1")
    a("%s_nz2:" % name)
    a("v_mov_b32 v80, 0x3f803f80")
    for q in range(4):
        a("v_mov_b32 v%d, 0" % (76 + q))
    a("s_waitcnt vmcnt(8)")
    for e in range(8):
        for tkn in range(2):
            x = X + tkn * 8 + e
            a("v_dot2_f32_bf16 v%d, v%d, v80, v%d" % (76 + tkn, x, 76 + tkn))
            a("v_dot2_f32_bf16 v%d, v%d, v%d, v%d" % (78 + tkn, x, GW + e, 78 + tkn))
            a("v_lshlrev_b32 v%d, 16, v%d" % (F + 16 * tkn + 2 * e, x))
            a("v_and_b32 v%d, 0xffff0000, v%d" % (F + 16 * tkn + 2 * e + 1, x))
    wave_reduce(a, [76, 77, 78, 79])
    a("s_nop 1")
    for q in range(4):
        a("v_readlane_b32 s%d, v%d, 63" % (4 + q, 76 + q))
    a("s_nop 1")
    a("v_mov_b32 v81, 0x3a800000")
    a("v_mul_f32 v82, s4, v81")
    a("v_mul_f32 v83, s5, v81")
    a("v_mov_b32 v76, 0")
    a("v_mov_b32 v77, 0")
    for k in range(16):
        for tkn in range(2):
            f = F + 16 * tkn + k
            a("v_sub_f32 v%d, v%d, v%d" % (f, f, 82 + tkn))
            a("v_fmac_f32 v%d, v%d, v%d" % (76 + tkn, f, f))
    wave_reduce(a, [76, 77])
    a("s_nop 1")
    a("v_readlane_b32 s8, v76, 63")
    a("v_readlane_b32 s9, v77, 63")
    a("v_cmp_eq_u32 vcc, 1, v0")
    a("v_mov_b32 v84, 0x%x" % f2u(1e-5))
    a("v_mov_b32 v86, s8")
    a("v_mov_b32 v87, s9")
    a("v_cndmask_b32 v86, v86, v87, vcc")
    a("v_cndmask_b32 v82, v82, v83, vcc")
    a("v_fma_f32 v86, v86, v81, v84")
    a("v_rsq_f32 v88, v86")
    a("v_mov_b32 v85, s6")
    a("v_mov_b32 v87, s7")
    a("v_cndmask_b32 v85, v85, v87, vcc")
    a("v_mul_f32 v89, v82, v88")
    a("v_sub_f32 v89, 0, v89")
    a("v_mul_f32 v85, 0x%x, v85" % f2u(-LOG2E))
    a("v_exp_f32 v85, v85")
    a("s_lshl_b32 s36, s3, 4")
    a("v_add_f32 v85, 1.0, v85")
    a("v_rcp_f32 v85, v85")
    a("v_lshl_add_u32 v3, v0, 3, s36")
    a("v_add_u32 v3, %d, v3" % AUX)
    a("s_lshl_b32 s36, s35, 2")
    a("s_add_u32 s36, s36, %d" % WS_G)
    a("s_mov_b64 exec, 3")
    a("ds_write_b64 v3, v[88:89]")
    a("buffer_store_dword v85, v1, s[40:43], s36 offen" + WT)
    a("s_mov_b64 exec, -1")
    a("v_mov_b32 v3, %d" % AUX)
    a("s_waitcnt lgkmcnt(0)")
    a("s_barrier")
    for q in range(4):
        a("ds_read_b128 %s, v3 offset:%d" % (vr(16 + 4 * q, 4), 16 * q))
    a("v_lshrrev_b32 v4, 5, v0")
    a("v_lshlrev_b32 v4, 19, v4")
    a("v_bfe_u32 v5, v0, 2, 3")
    a("v_lshl_add_u32 v4, v5, 10, v4")
    a("v_and_b32 v5, 3, v0")
    a("v_lshl_add_u32 v4, v5, 6, v4")
    a("s_lshl_b32 s36, s3, 20")
    a("s_lshr_b32 s37, s2, 2")
    a("s_lshl_b32 s37, s37, 13")
    a("s_add_u32 s36, s36, s37")
    a("s_and_b32 s37, s2, 3")
    a("s_lshl_b32 s37, s37, 8")
    a("s_add_u32 s36, s36, s37")
    a("s_waitcnt vmcnt(1) lgkmcnt(0)")
    H = 40
    for t in range(8):
        for hh in range(2):
            src = X2 + 2 * t + hh
            a("v_lshlrev_b32 v%d, 16, v%d" % (H + 8 * (2 * hh) + t, src))
            a("v_and_b32 v%d, 0xffff0000, v%d" % (H + 8 * (2 * hh + 1) + t, src))
        for q in range(4):
            a("v_fma_f32 v%d, v%d, v%d, v%d" % (H + 8 * q + t, H + 8 * q + t, 16 + 2 * t, 17 + 2 * t))
    for q in range(4):
        for p in range(4):
            a("v_cvt_pk_bf16_f32 v%d, v%d, v%d" % (72 + 4 * q + p, H + 8 * q + 2 * p, H + 8 * q + 2 * p + 1))
        a("buffer_store_dwordx4 %s, v4, s[40:43], s36 offen offset:%d%s" % (vr(72 + 4 * q, 4), 16 * q, WT))

def emit_p1_consumer(a, name, st):
    T = 16
    ra = RegAlloc(1, 256)
    vt = [ra.alloc("t%d" % i) for i in range(8)]
    vA = ra.alloc("aA"); vB = [ra.alloc("aB0"), ra.alloc("aB1")]
    vAb = ra.alloc("aAb"); vBb = [ra.alloc("aBb0"), ra.alloc("aBb1")]
    vs0 = ra.alloc("sg0"); vs1 = ra.alloc("sg1")
    fr = ra.alloc("frag", 96, 4)
    acc = ra.alloc("acc", 108, 4)
    def accr(p, tb): return acc + (p * 9 + tb) * 4
    def fA(s, p): return fr + s * 48 + p * 4
    def fB(s, tb): return fr + s * 48 + 12 + tb * 4
    a("v_and_b32 v%d, 3, v0" % vt[0])
    a("v_bfe_u32 v%d, v0, 2, 2" % vt[1])
    a("v_lshrrev_b32 v%d, 4, v0" % vt[2])
    a("v_lshl_add_u32 v%d, v%d, 3, v%d" % (vt[3], vt[2], vt[1]))
    a("v_lshlrev_b32 v%d, 7, v%d" % (vt[3], vt[3]))
    a("v_and_b32 v%d, 1, v%d" % (vt[4], vt[0]))
    a("v_lshl_add_u32 v%d, v%d, 3, v%d" % (vt[3], vt[4], vt[3]))
    a("v_lshrrev_b32 v%d, 1, v%d" % (vt[4], vt[1]))
    a("v_and_b32 v%d, 1, v%d" % (vt[5], vt[2]))
    a("v_lshl_add_u32 v%d, v%d, 1, v%d" % (vt[4], vt[5], vt[4]))
    a("v_lshlrev_b32 v%d, 1, v%d" % (vt[4], vt[4]))
    a("v_lshrrev_b32 v%d, 1, v%d" % (vt[5], vt[0]))
    a("s_lshl_b32 s36, s3, 1")
    a("v_add_u32 v%d, s36, v%d" % (vt[5], vt[5]))
    a("v_xor_b32 v%d, v%d, v%d" % (vt[5], vt[5], vt[4]))
    a("v_lshl_add_u32 v%d, v%d, 4, v%d" % (vAb, vt[5], vt[3]))
    a("v_add_u32 v%d, 18432, v%d" % (vAb, vAb))
    a("v_and_b32 v%d, 15, v0" % vt[3])
    a("v_lshrrev_b32 v%d, 1, v%d" % (vt[4], vt[3]))
    a("v_xor_b32 v%d, v%d, v%d" % (vt[4], vt[4], vt[2]))
    a("v_lshlrev_b32 v%d, 4, v%d" % (vt[4], vt[4]))
    a("v_lshl_add_u32 v%d, v%d, 7, v%d" % (vBb[0], vt[3], vt[4]))
    a("v_xor_b32 v%d, 64, v%d" % (vBb[1], vBb[0]))
    a("v_mov_b32 v%d, v%d" % (vA, vAb))
    a("v_mov_b32 v%d, v%d" % (vB[0], vBb[0]))
    a("v_mov_b32 v%d, v%d" % (vB[1], vBb[1]))
    def reads(sub):
        out = []
        for p in range(3):
            out.append("ds_read_b64_tr_b16 %s, v%d offset:%d" % (vr(fA(sub, p), 2), vA, p * 8192 + sub * 4096))
            out.append("ds_read_b64_tr_b16 %s, v%d offset:%d" % (vr(fA(sub, p) + 2, 2), vA, p * 8192 + sub * 4096 + 512))
        for tb in range(9):
            out.append("ds_read_b128 %s, v%d offset:%d" % (vr(fB(sub, tb), 4), vB[sub], tb * 2048))
        return out
    def mfmas(s, zero=False):
        out = []
        for tb in range(9):
            for p in range(3):
                if p == 0 and tb == 0: continue
                r = accr(p, tb)
                out.append("%s %s, %s, %s, %s" % (MF, vr(r, 4), vr(fA(s, p), 4), vr(fB(s, tb), 4), "0" if zero else vr(r, 4)))
        return out
    a("s_mov_b32 s38, 0")
    a("s_mov_b32 s39, 2")
    a("s_and_b32 s34, s2, 7")
    a("s_barrier")
    st.mark(1)
    for r in reads(0): a(r)
    def body(last=False, first=False, sig=False):
        a("s_waitcnt lgkmcnt(0)")
        ex = [] if last else ["s_add_u32 s38, s38, %d" % STG1, "s_cmp_eq_u32 s38, %d" % (3 * STG1), "s_cselect_b32 s38, 0, s38"]
        weave(a, mfmas(0, first), reads(1) + ex)
        a("s_waitcnt lgkmcnt(0)" + (" vmcnt(0)" if sig else ""))
        if last:
            weave(a, mfmas(1), [])
        else:
            a("s_barrier")
            if sig:
                signal(a, 34, vs0, vs1, "%s_sigln" % name)
            fill = ["v_add_u32 v%d, s38, v%d" % (vA, vAb), "v_add_u32 v%d, s38, v%d" % (vB[0], vBb[0])] + reads(0) + \
                   ["v_add_u32 v%d, s38, v%d" % (vB[1], vBb[1])]
            if not (first or sig):
                fill += ["s_add_u32 s39, s39, 1", "s_cmp_lt_u32 s39, %d" % (T - 1)]
            weave(a, mfmas(1), fill)
    body(first=True)
    body(sig=True)
    a("%s_c1loop:" % name)
    body()
    a("s_cbranch_scc1 %s_c1loop" % name)
    body(last=True)
    st.mark(2)
    a("v_and_b32 v%d, 15, v0" % vt[0])
    a("v_lshrrev_b32 v%d, 4, v0" % vt[1])
    a("v_and_b32 v%d, 1, v%d" % (vt[2], vt[0]))
    a("v_lshrrev_b32 v%d, 1, v%d" % (vt[3], vt[0]))
    a("v_mul_u32_u24 v%d, 72, v%d" % (vt[4], vt[2]))
    a("v_add_u32 v%d, v%d, v%d" % (vt[3], vt[3], vt[4]))
    a("v_lshlrev_b32 v%d, 7, v%d" % (vt[3], vt[3]))
    a("v_lshrrev_b32 v%d, 2, v%d" % (vt[4], vt[0]))
    a("v_lshl_add_u32 v%d, v%d, 2, v%d" % (vt[4], vt[2], vt[4]))
    a("v_lshrrev_b32 v%d, 1, v%d" % (vt[5], vt[1]))
    a("s_lshl_b32 s36, s3, 1")
    a("v_add_u32 v%d, s36, v%d" % (vt[5], vt[5]))
    a("v_xor_b32 v%d, v%d, v%d" % (vt[5], vt[5], vt[4]))
    a("v_lshl_add_u32 v%d, v%d, 4, v%d" % (vt[3], vt[5], vt[3]))
    a("v_and_b32 v%d, 1, v%d" % (vt[5], vt[1]))
    a("v_lshl_add_u32 v%d, v%d, 3, v%d" % (vt[3], vt[5], vt[3]))
    a("v_add_u32 v%d, %d, v%d" % (vt[6], QKV, vt[3]))
    a("v_xor_b32 v%d, 64, v%d" % (vt[7], vt[6]))
    k = 0
    for tb in range(9):
        for p in range(3):
            if p == 0 and tb == 0: continue
            r = accr(p, tb)
            t = fr + (k % 8) * 2
            k += 1
            a("v_cvt_pk_bf16_f32 v%d, v%d, v%d" % (t, r, r + 1))
            a("v_cvt_pk_bf16_f32 v%d, v%d, v%d" % (t + 1, r + 2, r + 3))
            a("ds_write_b64 v%d, %s offset:%d" % (vt[6 + (tb & 1)], vr(t, 2), p * 18432 + tb * 1024))
    a("s_waitcnt lgkmcnt(0)")

def emit_p1_loader(a, name, rot, extra):
    T = 16
    a("v_lshrrev_b32 v40, 3, v0")
    a("v_and_b32 v41, 7, v0")
    a("s_mul_i32 s36, s34, 36")
    a("v_add_u32 v42, s36, v40")
    a("s_lshl_b32 s37, s30, 7")
    a("s_sub_u32 s37, s37, 16")
    for i in range(5):
        a("v_add_u32 v43, %d, v42" % (8 * i))
        a("v_bfe_u32 v44, v43, 1, 3")
        a("v_xor_b32 v44, v44, v41")
        a("v_add_u32 v43, s37, v43")
        a("v_max_i32 v43, 0, v43")
        a("v_lshlrev_b32 v43, 11, v43")
        a("v_lshl_add_u32 v%d, v44, 4, v43" % (2 + i))
    a("s_mov_b32 s36, 6144")
    a("v_mul_lo_u32 v43, v40, s36")
    a("v_bfe_u32 v44, v0, 4, 1")
    a("v_lshlrev_b32 v44, 1, v44")
    a("v_xor_b32 v44, v44, v41")
    a("v_lshl_add_u32 v45, v44, 4, v43")
    a("v_xor_b32 v46, 64, v45")
    a("s_mul_i32 s37, s34, 6")
    for j in range(6):
        a("s_add_u32 s36, s37, %d" % j)
        a("s_and_b32 s4, s36, 7")
        a("s_mul_i32 s4, s4, %d" % (8 * 6144))
        a("s_lshr_b32 s5, s36, 3")
        a("s_lshl_b32 s5, s5, 11")
        a("s_add_u32 s4, s4, s5")
        a("v_add_u32 v%d, s4, v%d" % (7 + j, 45 + (j & 1)))
    a("s_mul_i32 s6, s34, %d" % (36 * 128))
    a("s_mul_i32 s7, s34, 6144")
    a("s_add_u32 s7, s7, 18432")
    a("s_lshl_b32 s9, s31, 7")
    a("s_mul_i32 s10, s32, %d" % rot[0])
    a("s_mul_i32 s36, s33, %d" % rot[1])
    a("s_add_u32 s10, s10, s36")
    a("s_mov_b32 s38, 0")
    a("s_mov_b32 s39, 0")
    def issue():
        rot_stage(a, 39, 10, rot[2], 11)
        a("s_lshl_b32 s4, s11, 7")
        a("s_mul_i32 s5, s11, %d" % (64 * 6144))
        a("s_add_u32 s5, s5, s9")
        a("s_add_u32 s8, s38, s6")
        for i in range(5):
            a("s_add_u32 m0, s8, %d" % (i * 1024))
            a("s_mov_b32 exec_hi, 0" if i == 4 else "s_nop 0")
            a("buffer_load_dwordx4 v%d, s[44:47], s4 offen lds" % (2 + i))
        a("s_mov_b64 exec, -1")
        a("s_add_u32 s8, s38, s7")
        for j in range(6):
            a("s_add_u32 m0, s8, %d" % (j * 1024))
            a("s_nop 0")
            a("buffer_load_dwordx4 v%d, s[48:51], s5 offen lds" % (7 + j))
        a("s_add_u32 s38, s38, %d" % STG1)
        a("s_cmp_eq_u32 s38, %d" % (3 * STG1))
        a("s_cselect_b32 s38, 0, s38")
        a("s_add_u32 s39, s39, 1")
    issue(); issue()
    extra()
    a("s_barrier")
    a("%s_l1loop:" % name)
    a("s_waitcnt vmcnt(11)")
    a("s_barrier")
    issue()
    a("s_cmp_lt_u32 s39, %d" % T)
    a("s_cbranch_scc1 %s_l1loop" % name)
    a("s_waitcnt vmcnt(11)")
    a("s_barrier")
    a("s_waitcnt vmcnt(0)")
    a("s_barrier")

def emit_attn_setup(a):
    a("s_and_b32 s34, s3, 1")
    a("s_bfe_u32 s35, s3, 0x10001")
    a("s_lshr_b32 s38, s3, 2")
    a("s_lshl_b32 s36, s38, 5")
    a("s_mul_i32 s37, s35, 72")
    a("s_add_u32 s36, s36, s37")
    a("s_sub_u32 s36, s36, 8")
    a("s_lshl_b32 s36, s36, 7")
    a("s_add_u32 s39, s36, %d" % QKV)
    a("s_lshl_b32 s37, s35, 2")
    a("s_add_u32 s37, s37, 4")
    a("s_lshl_b32 s36, s34, 2")
    a("v_and_b32 v1, 15, v0")
    a("v_lshrrev_b32 v2, 4, v0")
    a("v_lshrrev_b32 v3, 1, v1")
    a("v_add_u32 v3, s37, v3")
    a("v_and_b32 v3, 7, v3")
    a("v_add_u32 v4, s36, v2")
    a("v_xor_b32 v4, v4, v3")
    a("v_lshlrev_b32 v4, 4, v4")
    a("v_lshl_add_u32 v4, v1, 7, v4")
    a("v_add_u32 v4, s39, v4")
    a("v_and_b32 v5, 3, v0")
    a("v_bfe_u32 v6, v0, 2, 2")
    a("v_lshrrev_b32 v7, 1, v6")
    a("v_lshl_add_u32 v7, v2, 1, v7")
    a("v_add_u32 v7, s37, v7")
    a("v_and_b32 v7, 7, v7")
    a("v_lshrrev_b32 v8, 1, v5")
    a("v_add_u32 v8, s36, v8")
    a("v_xor_b32 v8, v8, v7")
    a("v_lshlrev_b32 v8, 4, v8")
    a("v_and_b32 v9, 1, v5")
    a("v_lshl_add_u32 v8, v9, 3, v8")
    a("v_lshl_add_u32 v9, v2, 2, v6")
    a("v_lshl_add_u32 v8, v9, 7, v8")
    a("v_add_u32 v8, s39, v8")
    a("v_xor_b32 v9, 32, v8")
    a("v_lshlrev_b32 v10, 2, v2")
    a("v_sub_u32 v10, v1, v10")
    for r in range(4):
        a("v_subrev_u32 v11, %d, v10" % r)
        a("v_cmp_gt_u32 s[%d:%d], 8, v11" % (4 + 2 * r, 5 + 2 * r))
        a("v_add_u32 v11, %d, v10" % (16 - r))
        a("v_cmp_gt_u32 s[%d:%d], 8, v11" % (12 + 2 * r, 13 + 2 * r))
    a("v_lshrrev_b32 v3, 3, v1")
    a("v_lshlrev_b32 v3, 10, v3")
    a("v_lshl_add_u32 v3, v2, 8, v3")
    a("v_and_b32 v5, 7, v1")
    a("v_lshl_add_u32 v3, v5, 5, v3")
    a("s_or_b32 s36, s30, s38")
    a("s_cmp_eq_u32 s36, 0")
    for r in range(4):
        a("s_cselect_b64 s[%d:%d], 0, s[%d:%d]" % (20 + 2 * r, 21 + 2 * r, 12 + 2 * r, 13 + 2 * r))
    a("v_mov_b32 v12, 0xff800000")
    a("v_mov_b32 v13, 0x%x" % f2u(CS))
    a("s_lshl_b32 s36, s30, 18")
    a("s_lshl_b32 s37, s31, 1")
    a("s_add_u32 s37, s37, s34")
    a("s_lshl_b32 s37, s37, 13")
    a("s_add_u32 s36, s36, s37")
    a("s_lshl_b32 s37, s38, 12")
    a("s_add_u32 s36, s36, s37")
    a("s_lshl_b32 s37, s35, 4")
    a("s_add_u32 s36, s36, s37")
    a("s_add_u32 s84, s36, %d" % WS_O)

def emit_attn_run(a):
    Q = 16; K = 24; V = 36
    for n in range(3):
        a("ds_read_b128 %s, v4 offset:%d" % (vr(K + 4 * n, 4), 18432 + n * 2048))
    for u in range(2):
        a("ds_read_b128 %s, v4 offset:%d" % (vr(Q + 4 * u, 4), (u + 1) * 2048))
    for dt in range(2):
        for n in range(3):
            a("ds_read_b64_tr_b16 %s, v%d offset:%d" % (vr(V + dt * 6 + n * 2, 2), 8 + dt, 2 * 18432 + n * 2048))
    S = 48
    a("s_waitcnt lgkmcnt(6)")
    for u in range(2):
        a("%s %s, %s, %s, 0" % (MF, vr(S + 8 * u, 4), vr(K + 4 * u, 4), vr(Q + 4 * u, 4)))
        a("%s %s, %s, %s, 0" % (MF, vr(S + 8 * u + 4, 4), vr(K + 4 * (u + 1), 4), vr(Q + 4 * u, 4)))
    a("s_nop 7")
    M = 64; TM = 66; SUM = 68; P = 72; O = 80
    for u in range(2):
        pm = 20 if u == 0 else 12
        for r in range(4):
            a("v_cndmask_b32 v%d, v12, v%d, s[%d:%d]" % (S + 8 * u + r, S + 8 * u + r, pm + 2 * r, pm + 2 * r + 1))
            a("v_cndmask_b32 v%d, v12, v%d, s[%d:%d]" % (S + 8 * u + 4 + r, S + 8 * u + 4 + r, 4 + 2 * r, 5 + 2 * r))
    for u in range(2):
        s = S + 8 * u
        a("v_max3_f32 v%d, v%d, v%d, v%d" % (M + u, s, s + 1, s + 2))
        a("v_max3_f32 v%d, v%d, v%d, v%d" % (M + u, M + u, s + 3, s + 4))
        a("v_max3_f32 v%d, v%d, v%d, v%d" % (M + u, M + u, s + 5, s + 6))
        a("v_max_f32 v%d, v%d, v%d" % (M + u, M + u, s + 7))
    def xred(Rg, op):
        for sw in ("v_permlane16_swap_b32", "v_permlane32_swap_b32"):
            for u in range(2):
                a("v_mov_b32 v%d, v%d" % (TM + u, Rg + u))
            a("s_nop 1")
            for u in range(2):
                a("%s v%d, v%d" % (sw, Rg + u, TM + u))
            a("s_nop 1")
            for u in range(2):
                a("%s v%d, v%d, v%d" % (op, Rg + u, Rg + u, TM + u))
    xred(M, "v_max_f32")
    for u in range(2):
        a("v_mul_f32 v%d, v%d, v13" % (M + u, M + u))
    for u in range(2):
        for r in range(8):
            s = S + 8 * u + r
            a("v_fma_f32 v%d, v%d, v13, -v%d" % (s, s, M + u))
        for r in range(8):
            s = S + 8 * u + r
            a("v_exp_f32 v%d, v%d" % (s, s))
    for u in range(2):
        s = S + 8 * u
        a("v_add_f32 v%d, v%d, v%d" % (SUM + u, s, s + 1))
        for r in range(2, 8):
            a("v_add_f32 v%d, v%d, v%d" % (SUM + u, SUM + u, s + r))
    xred(SUM, "v_add_f32")
    for u in range(2):
        a("v_rcp_f32 v%d, v%d" % (SUM + u, SUM + u))
    a("s_nop 0")
    for u in range(2):
        for r in range(8):
            s = S + 8 * u + r
            a("v_mul_f32 v%d, v%d, v%d" % (s, s, SUM + u))
        for p in range(4):
            a("v_cvt_pk_bf16_f32 v%d, v%d, v%d" % (P + 4 * u + p, S + 8 * u + 2 * p, S + 8 * u + 2 * p + 1))
    a("s_waitcnt lgkmcnt(0)")
    a("s_barrier")
    for u in range(2):
        for dt in range(2):
            a("%s %s, %s, %s, 0" % (MF, vr(O + 8 * u + 4 * dt, 4), vr(V + dt * 6 + 2 * u, 4), vr(P + 4 * u, 4)))
    a("s_nop 7")
    for u in range(2):
        for p in range(4):
            a("v_cvt_pk_bf16_f32 v%d, v%d, v%d" % (S + 4 * u + p, O + 8 * u + 2 * p, O + 8 * u + 2 * p + 1))
        a("buffer_store_dwordx4 %s, v3, s[40:43], s84 offen offset:%d%s" % (vr(S + 4 * u, 4), u * 2048, WT))

def gen_mega(a, name="mk_kernel", stamp=False, rot1=(1, 1, 4), rot2=(1, 1, 4), rot3=(1, 1, 4), warm=True, usig=1):
    st = Stamps(a, stamp)
    LDW1 = 7168
    kernel_header(a, name)
    a("s_cmp_ge_u32 s2, 256")
    a("s_cbranch_scc1 %s_end" % name)
    load_ptrs(a)
    a("s_and_b32 s28, s2, 7")
    a("s_lshr_b32 s29, s2, 3")
    map_p1(a)
    a("s_waitcnt lgkmcnt(0)")
    srd(a, S_WS, 26, WS_END)
    srd(a, S_X, 4, 2048 * 1024 * 2)
    srd(a, S_WQKV, 6, 1024 * 3072 * 2)
    srd(a, S_GATE, 20, 2048)
    srd(a, S_W1, 12, 2048 * 3584 * 2)
    srd(a, S_B1, 14, 3584 * 2)
    srd(a, S_WO, 8, 1024 * 1024 * 2)
    srd(a, S_W2, 16, 3584 * 2048 * 2)
    srd(a, S_B2, 18, 2048 * 2)
    srd(a, S_OUT, 22, 2048 * 1024 * 2)
    srd(a, S_DBG, 24, 256)
    st.mark(0)
    a("s_cmp_ge_u32 s3, 4")
    a("s_cbranch_scc1 %s_loader" % name)
    emit_ln(a, name)
    emit_p1_consumer(a, name, st)
    emit_attn_setup(a)
    a("s_and_b32 s36, s30, 7")
    a("s_lshl_b32 s36, s36, 3")
    a("s_lshr_b32 s37, s31, 3")
    a("s_add_u32 s36, s36, s37")
    a("s_lshr_b32 s37, s30, 3")
    a("s_lshl_b32 s37, s37, 1")
    a("s_add_u32 s36, s36, s37")
    a("s_lshl_b32 s36, s36, 7")
    a("s_and_b32 s37, s31, 7")
    a("s_lshl_b32 s37, s37, 2")
    a("s_add_u32 s36, s36, s37")
    a("s_add_u32 s36, s36, %d" % (WS_MB + 64))
    a("v_and_b32 v254, 3, v0")
    a("v_lshlrev_b32 v254, 13, v254")
    a("v_bfe_u32 v255, v0, 2, 1")
    a("v_lshl_add_u32 v254, v255, 9, v254")
    a("v_add_u32 v254, s36, v254")
    a("s_and_b32 s34, s3, 1")
    a("s_lshr_b32 s35, s3, 1")
    map_p2(a)
    a("s_lshl_b32 s36, s31, 8")
    a("s_lshl_b32 s37, s34, 7")
    a("s_add_u32 s38, s36, s37")
    a("v_lshrrev_b32 v100, 4, v0")
    a("v_lshlrev_b32 v100, 3, v100")
    BIAS = 104
    for ia in range(4):
        a("buffer_load_dwordx2 %s, v100, %s, s38 offen offset:%d" % (vr(BIAS + ia * 2, 2), R(S_B1), ia * 32))
    a("s_barrier")
    st.mark(3)
    emit_attn_run(a)
    st.mark(4)
    ra = RegAlloc(1, 256)
    g = G128(a, ra)
    vt, fr = g.vt, g.fr
    accA = ra.alloc("accA", 64, 4)
    accY = ra.alloc("accY", 64, 4)
    assert accA <= BIAS and BIAS + 8 <= accY
    vg = ra.alloc("g", 8, 2)
    vb = ra.alloc("b2", 8, 2)
    vs0 = ra.alloc("sg0"); vs1 = ra.alloc("sg1")
    map_p3(a, 4, 5, 6, 7, 8)
    a("s_cmp_ge_u32 s29, 28")
    a("s_cbranch_scc1 %s_c_idle" % name)
    def setup_addr():
        g.setup_lane()
        g.setup_T(0, 'n', 34)
        g.setup_F(1, 35)
        g.setup_T(0, 'u', 34)
        g.setup_F(0, 34)
        g.setup_T(1, 'u', 35)
    save = ra.next
    setup_addr()
    a("s_waitcnt vmcnt(2)")
    for ia in range(4):
        for hh in range(2):
            src = BIAS + ia * 2 + hh
            for ib in range(4):
                r = accY + (ia * 4 + ib) * 4 + hh * 2
                a("v_lshlrev_b32 v%d, 16, v%d" % (r, src))
                a("v_and_b32 v%d, 0xffff0000, v%d" % (r + 1, src))
    a("s_barrier")
    st.mark(5)
    d2 = lambda b: ('T', 'F', 'n', b)
    d3a = lambda b: ('T', 'F', 'u', b)
    d3y = lambda b: ('F', 'T', 'u', b)
    for r in g.reads(d2(0), 0): a(r)
    for b in range(4):
        g.stage(accY, d2(b), d2((b + 1) % 4), vm0=(b == 2))
        if b == 2:
            push(a, 254, vs0, 8, "%s_sigo" % name)
    g.run(accY, 'T', 'F', 'n', 28, d3a(0), "%s_c2loop" % name, 39)
    st.mark(6)
    def load_gb():
        a("s_lshl_b32 s36, s4, 7")
        a("s_lshl_b32 s37, s35, 6")
        a("s_add_u32 s9, s36, s37")
        a("v_and_b32 v%d, 15, v0" % vt[0])
        a("v_add_u32 v%d, s9, v%d" % (vt[0], vt[0]))
        a("v_lshlrev_b32 v%d, 2, v%d" % (vt[1], vt[0]))
        a("v_lshlrev_b32 v%d, 1, v%d" % (vt[2], vt[0]))
        a("s_mov_b32 s36, %d" % WS_G)
        for ib in range(4):
            a("buffer_load_dword v%d, v%d, %s, s36 offen offset:%d" % (vg + 2 * ib, vt[1], R(S_WS), ib * 64))
            a("buffer_load_ushort v%d, v%d, %s, 0 offen offset:%d" % (vb + 2 * ib, vt[2], R(S_B2), ib * 32))
    load_gb()
    kc = accA
    for i, v in enumerate((C1, C1, C2, C2, 1.0, 1.0)):
        a("v_mov_b32 v%d, 0x%x" % (kc + i, f2u(v)))
    a("s_mul_i32 s36, s30, %d" % (112 * 8192))
    a("s_lshl_b32 s37, s31, 15")
    a("s_add_u32 s36, s36, s37")
    a("s_lshl_b32 s37, s34, 14")
    a("s_add_u32 s36, s36, s37")
    a("s_lshl_b32 s37, s35, 12")
    a("s_add_u32 s36, s36, s37")
    a("s_add_u32 s36, s36, %d" % WS_U)
    a("v_lshlrev_b32 v%d, 4, v0" % vt[0])
    gi = 0
    for m in range(2):
        for ib in range(4):
            regs = [accY + ((2 * m) * 4 + ib) * 4 + e for e in range(4)] + [accY + ((2 * m + 1) * 4 + ib) * 4 + e for e in range(4)]
            tb = accA + 8 + (gi % 4) * 12
            gi += 1
            for p in range(4):
                x = regs[2 * p]; t = tb + 2 * p
                a("v_pk_mul_f32 %s, %s, %s" % (vr(t, 2), vr(x, 2), vr(x, 2)))
                a("v_pk_fma_f32 %s, %s, %s, %s" % (vr(t, 2), vr(t, 2), vr(kc + 2, 2), vr(kc, 2)))
                a("v_pk_mul_f32 %s, %s, %s" % (vr(t, 2), vr(t, 2), vr(x, 2)))
            for e in range(8):
                a("v_exp_f32 v%d, v%d" % (tb + e, tb + e))
            for p in range(4):
                a("v_pk_add_f32 %s, %s, %s" % (vr(tb + 2 * p, 2), vr(tb + 2 * p, 2), vr(kc + 4, 2)))
            for e in range(8):
                a("v_rcp_f32 v%d, v%d" % (tb + e, tb + e))
            for p in range(4):
                a("v_pk_mul_f32 %s, %s, %s" % (vr(tb + 2 * p, 2), vr(tb + 2 * p, 2), vr(regs[2 * p], 2)))
            for p in range(4):
                a("v_cvt_pk_bf16_f32 v%d, v%d, v%d" % (tb + 8 + p, tb + 2 * p, tb + 2 * p + 1))
            a("s_add_u32 s37, s36, %d" % (m * 8192 + ib * 1024))
            a("buffer_store_dwordx4 %s, v%d, %s, s37 offen%s" % (vr(tb + 8, 4), vt[0], R(S_WS), WT))
    a("s_cmp_ge_u32 s31, 14")
    a("s_cselect_b32 s37, 1, 0")
    a("s_cselect_b32 s38, 14, 0")
    a("s_sub_u32 s38, s31, s38")
    a("s_and_b32 s36, s30, 3")
    a("s_lshl_b32 s36, s36, 6")
    a("s_add_u32 s36, s36, s37")
    a("s_lshr_b32 s37, s30, 2")
    a("s_lshl_b32 s37, s37, 2")
    a("s_add_u32 s36, s36, s37")
    a("s_lshl_b32 s36, s36, 7")
    a("s_lshl_b32 s38, s38, 2")
    a("s_add_u32 s36, s36, s38")
    a("s_add_u32 s36, s36, %d" % WS_MB)
    a("v_and_b32 v254, 7, v0")
    a("v_lshlrev_b32 v254, 10, v254")
    a("v_bfe_u32 v255, v0, 3, 1")
    a("v_lshl_add_u32 v254, v255, 8, v254")
    a("v_add_u32 v254, s36, v254")
    a("s_mov_b32 s86, 1")
    a("s_branch %s_c_p3" % name)
    a("%s_c_idle:" % name)
    ra.next = save
    setup_addr()
    a("s_waitcnt vmcnt(0)")
    a("s_barrier")
    push(a, 254, vs0, 8, "%s_sigo2" % name)
    a("s_mov_b32 s86, 0")
    a("s_barrier")
    a("s_barrier")
    load_gb()
    for r in g.reads(d3a(0), 0): a(r)
    a("%s_c_p3:" % name)
    st.mark(7)
    for b in range(8):
        sig = (b == usig)
        cur = d3a(b % 4)
        nxt = d3a((b + 1) % 4) if b < 7 else d3y(0)
        a("s_waitcnt lgkmcnt(0)")
        ex = ["v_mov_b32 v%d, 0" % (accY + 8 * b + i) for i in range(4)] if True else []
        weave(a, g.mfmas(accA, 0, b == 0), g.reads(cur, 1) + ex)
        a("s_waitcnt lgkmcnt(0)" + (" vmcnt(0)" if sig else ""))
        a("s_barrier")
        if sig:
            a("s_cmp_eq_u32 s86, 0")
            a("s_cbranch_scc1 %s_sigu" % name)
            push(a, 254, vs0, 16, "%s_sigu" % name)
        ex = ["v_mov_b32 v%d, 0" % (accY + 8 * b + 4 + i) for i in range(4)]
        weave(a, g.mfmas(accA, 1), g.reads(nxt, 0) + ex)
    st.mark(8)
    g.run(accY, 'F', 'T', 'u', 28, None, "%s_c3loop" % name, 39)
    st.mark(9)
    a("s_waitcnt vmcnt(0)")
    for ib in range(4):
        a("v_lshlrev_b32 v%d, 16, v%d" % (vb + 2 * ib, vb + 2 * ib))
        a("v_sub_f32 v%d, 1.0, v%d" % (vg + 2 * ib + 1, vg + 2 * ib))
        a("v_mul_f32 v%d, v%d, v%d" % (vb + 2 * ib, vb + 2 * ib, vg + 2 * ib + 1))
    a("s_lshl_b32 s36, s4, 3")
    a("s_add_u32 s36, s36, s5")
    a("s_lshl_b32 s36, s36, 1")
    a("s_add_u32 s36, s36, s34")
    a("s_lshl_b32 s36, s36, 1")
    a("s_add_u32 s36, s36, s35")
    a("s_lshl_b32 s10, s36, 14")
    a("s_add_u32 s10, s10, %d" % WS_X)
    a("s_lshl_b32 s11, s36, 7")
    a("s_add_u32 s11, s11, %d" % (WS_X + XCH_FLAG))
    a("v_lshlrev_b32 v%d, 4, v0" % vt[3])
    a("s_cmp_eq_u32 s34, s8")
    a("s_cbranch_scc1 %s_recv" % name)
    for ib in range(4):
        G_ = vg + 2 * ib
        for ia in range(4):
            A_ = accA + (ia * 4 + ib) * 4
            Y_ = accY + (ia * 4 + ib) * 4
            for p in range(2):
                a("v_pk_mul_f32 %s, %s, %s op_sel:[0,0] op_sel_hi:[1,0]" % (vr(A_ + 2 * p, 2), vr(A_ + 2 * p, 2), vr(G_, 2)))
                a("v_pk_fma_f32 %s, %s, %s, %s op_sel:[0,1,0] op_sel_hi:[1,1,1]" % (vr(A_ + 2 * p, 2), vr(Y_ + 2 * p, 2), vr(G_, 2), vr(A_ + 2 * p, 2)))
            a("s_add_u32 s37, s10, %d" % (ia * 4096))
            a("buffer_store_dwordx4 %s, v%d, %s, s37 offen offset:%d%s" % (vr(A_, 4), vt[3], R(S_WS), ib * 1024, WT))
    a("v_mov_b32 v%d, 1" % vt[4])
    a("v_mov_b32 v%d, 0" % vt[5])
    a("s_waitcnt vmcnt(0)")
    a("s_mov_b64 exec, 1")
    a("buffer_atomic_add v%d, v%d, %s, s11 offen sc1" % (vt[4], vt[5], R(S_WS)))
    a("s_mov_b64 exec, -1")
    st.mark(10)
    st.dump(fr)
    a("s_endpgm")
    a("%s_recv:" % name)
    for ib in range(4):
        G_ = vg + 2 * ib
        for ia in range(4):
            A_ = accA + (ia * 4 + ib) * 4
            Y_ = accY + (ia * 4 + ib) * 4
            for p in range(2):
                a("v_pk_fma_f32 %s, %s, %s, %s op_sel:[0,0,0] op_sel_hi:[1,0,0]" % (vr(A_ + 2 * p, 2), vr(A_ + 2 * p, 2), vr(G_, 2), vr(vb + 2 * ib, 2)))
                a("v_pk_fma_f32 %s, %s, %s, %s op_sel:[0,1,0] op_sel_hi:[1,1,1]" % (vr(A_ + 2 * p, 2), vr(Y_ + 2 * p, 2), vr(G_, 2), vr(A_ + 2 * p, 2)))
    a("v_and_b32 v%d, 15, v0" % vt[0])
    a("v_add_u32 v%d, s9, v%d" % (vt[0], vt[0]))
    a("v_lshlrev_b32 v%d, 11, v%d" % (vt[0], vt[0]))
    a("v_bfe_u32 v%d, v0, 4, 1" % vt[1])
    a("v_lshl_add_u32 v%d, v%d, 5, v%d" % (vt[0], vt[1], vt[0]))
    a("v_lshrrev_b32 v%d, 5, v0" % vt[1])
    a("v_lshl_add_u32 v%d, v%d, 4, v%d" % (vt[0], vt[1], vt[0]))
    a("s_lshl_b32 s36, s5, 8")
    a("s_lshl_b32 s37, s34, 7")
    a("s_add_u32 s36, s36, s37")
    a("v_mov_b32 v%d, 0" % vt[5])
    a("s_mov_b32 s38, 0")
    a("%s_xpoll:" % name)
    a("buffer_load_dword v%d, v%d, %s, s11 offen%s" % (vt[4], vt[5], R(S_WS), WT))
    a("s_add_u32 s38, s38, 1")
    a("s_waitcnt vmcnt(0)")
    a("v_readfirstlane_b32 s37, v%d" % vt[4])
    a("s_cmp_lg_u32 s37, 0")
    a("s_cbranch_scc1 %s_got" % name)
    a("s_sleep 1")
    a("s_cmp_lt_u32 s38, %d" % SPIN_MAX)
    a("s_cbranch_scc1 %s_xpoll" % name)
    a("%s_got:" % name)
    st.mark(10)
    for k in range(16):
        ia, ib = k >> 2, k & 3
        a("s_add_u32 s37, s10, %d" % (ia * 4096))
        a("buffer_load_dwordx4 %s, v%d, %s, s37 offen offset:%d%s" % (vr(accY + (ia * 4 + ib) * 4, 4), vt[3], R(S_WS), ib * 1024, WT))
    gi = 0
    for m in range(2):
        a("s_waitcnt vmcnt(%d)" % (8 if m == 0 else 4))
        for ib in range(4):
            tb = fr + (gi % 4) * 4
            gi += 1
            for h in range(2):
                ia = 2 * m + h
                A_ = accA + (ia * 4 + ib) * 4
                Y_ = accY + (ia * 4 + ib) * 4
                for p in range(2):
                    a("v_pk_add_f32 %s, %s, %s" % (vr(A_ + 2 * p, 2), vr(A_ + 2 * p, 2), vr(Y_ + 2 * p, 2)))
                    a("v_cvt_pk_bf16_f32 v%d, v%d, v%d" % (tb + 2 * h + p, A_ + 2 * p, A_ + 2 * p + 1))
            a("s_nop 1")
            a("v_permlane16_swap_b32 v%d, v%d" % (tb, tb + 2))
            a("v_permlane16_swap_b32 v%d, v%d" % (tb + 1, tb + 3))
            a("s_add_u32 s37, s36, %d" % (ib * 16 * 2048))
            a("buffer_store_dwordx4 %s, v%d, %s, s37 offen offset:%d" % (vr(tb, 4), vt[0], R(S_OUT), m * 64))
    st.dump(fr + 16)
    a("s_endpgm")

    a("%s_loader:" % name)
    a("s_sub_u32 s34, s3, 4")
    a("v_lshlrev_b32 v100, 7, v0")
    def warm1():
        if not warm: return
        a("s_lshl_b32 s36, s2, 2")
        a("s_add_u32 s36, s36, s34")
        a("s_mul_i32 s37, s36, 14336")
        a("buffer_load_dword v101, v100, %s, s37 offen" % R(S_W1))
        a("s_add_u32 s37, s37, 8192")
        a("s_mov_b32 exec_hi, 0xffff")
        a("buffer_load_dword v101, v100, %s, s37 offen" % R(S_W1))
        a("s_lshl_b32 s37, s36, 11")
        a("s_mov_b64 exec, 0xffff")
        a("buffer_load_dword v101, v100, %s, s37 offen" % R(S_WO))
        a("s_mov_b64 exec, -1")
    emit_p1_loader(a, name, rot1, warm1)
    emit_attn_setup(a)
    L = L128(a)
    L.nv = 104
    vW1 = L.setup_T(LDW1, 'n')
    vWo = L.setup_T(2048, 'u')
    vW2 = L.setup_T(4096, 'u')
    vF = L.setup_F()
    VP, VPL, VPU, VPO = 120, 121, 122, 123
    a("s_sub_u32 s34, s3, 4")
    a("s_lshl_b32 s85, s34, 12")
    a("v_and_b32 v%d, 7, v0" % VPL)
    a("v_lshlrev_b32 v%d, 2, v%d" % (VPL, VPL))
    a("v_add_u32 v%d, 64, v%d" % (VPO, VPL))
    a("v_min_u32 v%d, 13, v0" % VPU)
    a("v_lshlrev_b32 v%d, 2, v%d" % (VPU, VPU))
    a("s_cmp_lg_u32 s34, 0")
    a("s_cbranch_scc1 %s_pln_ok" % name)
    a("s_mov_b32 s37, 0")
    poll_wait(a, VP, VPL, 37, 32, "%s_pln" % name, srd_=S_DBG)
    a("s_mov_b32 s38, 0")
    a("s_mov_b32 s39, 0")
    a("s_cmp_ge_u32 s29, 28")
    a("s_cbranch_scc1 %s_l_idle" % name)
    map_p2(a)
    a("s_mul_i32 s86, s34, %d" % (16 * LDW1))
    a("s_lshl_b32 s36, s31, 8")
    a("s_add_u32 s86, s86, s36")
    a("s_lshl_b32 s87, s30, 19")
    a("s_add_u32 s87, s87, s85")
    a("s_mul_i32 s35, s32, %d" % rot2[0])
    a("s_mul_i32 s36, s33, %d" % rot2[1])
    a("s_add_u32 s35, s35, s36")
    def lissue(A, B):
        a("s_add_u32 m0, s38, s85")
        a("s_add_u32 s1, s38, 16384")
        for i in range(4):
            a("buffer_load_dwordx4 v%d, %s, s%d offen offset:%d lds" % (A[0][i], R(A[1]), A[2], i * 1024))
        a("s_add_u32 m0, s1, s85")
        a("s_add_u32 s38, s38, 32768")
        for i in range(4):
            a("buffer_load_dwordx4 v%d, %s, s%d offen offset:%d lds" % (B[0][i], R(B[1]), B[2], i * 1024))
        a("s_and_b32 s38, s38, 0x1ffff")
        a("s_add_u32 s39, s39, 1")
    def issue2():
        rot_stage(a, 39, 35, rot2[2], 0)
        a("s_mul_i32 s30, s0, %d" % (64 * LDW1))
        a("s_add_u32 s30, s30, s86")
        a("s_lshl_b32 s31, s0, 14")
        a("s_add_u32 s31, s31, s87")
        lissue((vW1, S_W1, 30), (vF, S_WS, 31))
    a("s_barrier")
    issue2(); issue2(); issue2()
    emit_attn_run(a)
    def p3_state():
        map_p3(a, 4, 5, 6, 7, 8)
        a("s_lshl_b32 s10, s34, 15")
        a("s_lshl_b32 s36, s5, 8")
        a("s_add_u32 s10, s10, s36")
        a("s_lshl_b32 s36, s8, 20")
        a("s_add_u32 s10, s10, s36")
        a("s_lshl_b32 s11, s4, 18")
        a("s_add_u32 s11, s11, s85")
        a("s_lshl_b32 s36, s8, 17")
        a("s_add_u32 s11, s11, s36")
        a("s_add_u32 s11, s11, %d" % WS_O)
        a("s_mul_i32 s12, s5, %d" % (112 * 8192))
        a("s_add_u32 s12, s12, s85")
        a("s_mul_i32 s36, s8, %d" % (56 * 8192))
        a("s_add_u32 s12, s12, s36")
        a("s_add_u32 s12, s12, %d" % WS_U)
        a("s_lshl_b32 s13, s34, 16")
        a("s_lshl_b32 s36, s4, 8")
        a("s_add_u32 s13, s13, s36")
        a("s_mul_i32 s36, s8, %d" % (1792 * 4096))
        a("s_add_u32 s13, s13, s36")
        a("s_mul_i32 s14, s6, %d" % rot3[0])
        a("s_mul_i32 s36, s7, %d" % rot3[1])
        a("s_add_u32 s14, s14, s36")
        a("s_lshl_b32 s15, s2, 7")
        a("s_add_u32 s15, s15, %d" % WS_MB)
        a("s_mov_b32 s17, 0")
    p3_state()
    def issue3a():
        rot_stage(a, 17, 14, rot3[2], 0)
        a("s_lshl_b32 s30, s0, 17")
        a("s_add_u32 s30, s30, s10")
        a("s_lshl_b32 s31, s0, 14")
        a("s_add_u32 s31, s31, s11")
        lissue((vWo, S_WO, 30), (vF, S_WS, 31))
        a("s_add_u32 s17, s17, 1")
    def issue3y():
        rot_stage(a, 17, 14, rot3[2], 0)
        a("s_sub_u32 s0, s0, 8")
        a("s_lshl_b32 s30, s0, 14")
        a("s_add_u32 s30, s30, s12")
        a("s_lshl_b32 s31, s0, 18")
        a("s_add_u32 s31, s31, s13")
        lissue((vF, S_WS, 30), (vW2, S_W2, 31))
        a("s_add_u32 s17, s17, 1")
    def l0_poll_issue(voff, lab):
        a("s_cmp_lg_u32 s34, 0")
        a("s_cbranch_scc1 %s" % lab)
        poll_issue(a, VP, voff, 15)
        a("%s:" % lab)
    def l0_poll_wait(voff, lab, have, sleep=8):
        a("s_cmp_lg_u32 s34, 0")
        a("s_cbranch_scc1 %s_ok" % lab)
        poll_wait(a, VP, voff, 15, 1, lab, have=have, sleep=sleep)
    a("%s_l2loopa:" % name)
    a("s_waitcnt vmcnt(16)")
    a("s_barrier")
    issue2()
    a("s_cmp_lt_u32 s39, 24")
    a("s_cbranch_scc1 %s_l2loopa" % name)
    l0_poll_issue(VPO, "%s_pi1" % name)
    a("%s_l2loopb:" % name)
    a("s_waitcnt vmcnt(16)")
    a("s_barrier")
    issue2()
    a("s_cmp_lt_u32 s39, 32")
    a("s_cbranch_scc1 %s_l2loopb" % name)
    l0_poll_wait(VPO, "%s_po" % name, True)
    for k in range(3):
        a("s_waitcnt vmcnt(16)")
        a("s_barrier")
        issue3a()
    a("s_branch %s_l_p3" % name)
    a("%s_l_idle:" % name)
    a("s_barrier")
    emit_attn_run(a)
    p3_state()
    a("s_waitcnt vmcnt(0)")
    a("s_barrier")
    l0_poll_wait(VPO, "%s_po2" % name, False)
    a("s_barrier")
    issue3a(); issue3a(); issue3a()
    a("%s_l_p3:" % name)
    for k in range(5):
        a("s_waitcnt vmcnt(16)")
        a("s_barrier")
        if k == 2:
            l0_poll_issue(VPU, "%s_pi2" % name)
        issue3a()
    if warm:
        a("s_cmp_lt_u32 s29, 28")
        a("s_cbranch_scc1 %s_nowarm2" % name)
        a("s_sub_u32 s36, s29, 28")
        a("s_lshl_b32 s36, s36, 3")
        a("s_add_u32 s36, s36, s28")
        a("s_lshl_b32 s36, s36, 2")
        a("s_add_u32 s36, s36, s34")
        a("s_mul_i32 s37, s36, %d" % (896 * 128))
        for q in range(14):
            a("buffer_load_dword v101, v100, %s, s37 offen" % R(S_W2))
            a("s_add_u32 s37, s37, 8192")
        a("%s_nowarm2:" % name)
    a("s_waitcnt vmcnt(16)")
    l0_poll_wait(VPU, "%s_pu" % name, True, sleep=4)
    a("s_barrier")
    issue3y()
    a("%s_l3loop:" % name)
    a("s_waitcnt vmcnt(16)")
    a("s_barrier")
    issue3y()
    a("s_cmp_lt_u32 s17, 36")
    a("s_cbranch_scc1 %s_l3loop" % name)
    for p in range(3):
        a("s_waitcnt vmcnt(%d)" % (8 * (2 - p)))
        a("s_barrier")
    a("%s_end:" % name)
    a("s_endpgm")
    kernel_desc(a, name, 256)
    return (256, 512, LDS_TOTAL)
```
